```python
import torch

def _softmax(x, axis=-1):
    return torch.softmax(x, dim=axis)

def _gelu(x):
    return torch.nn.functional.gelu(x, approximate='tanh')

def _silu(x):
    return torch.nn.functional.silu(x)

def _sigmoid(x):
    return torch.sigmoid(x)

def _layernorm(x, axis=-1, eps=1e-05):
    m = x.mean(dim=axis, keepdim=True)
    v = x.var(dim=axis, keepdim=True, unbiased=False)
    return (x - m) / torch.sqrt(v + eps)

def _scatter_add(tgt, idx, src, axis=0):
    return tgt.clone().index_add_(axis, idx, src)

def _segment_sum(src, seg, n):
    out = torch.zeros((n,) + src.shape[1:], dtype=src.dtype)
    return out.index_add_(0, seg, src)

def _pad(x, pw):
    flat = tuple((v for pair in reversed(pw) for v in pair))
    return torch.nn.functional.pad(x, flat)
kernel_name = 'adaLN_cond__mha_block_cached__mixer_gmlp__prompt'

def setup_inputs():

    _w = lambda a: (lambda t: t.to(torch.bfloat16) if t.is_floating_point() else t)(torch.as_tensor(a))

    def _A_setup():
        B, Sq, D = (1, 2048, 512)
        H, Sk, Dh = (32, 2048, 128)
        return {'x': _w((lambda *s: torch.randn(*s, dtype=torch.bfloat16) * 0.05)(B, Sq, D)), 'k_cache': _w((lambda *s: torch.randn(*s, dtype=torch.bfloat16) * 3.2)(B, H, Sk, Dh)), 'v_cache': _w((lambda *s: torch.randn(*s, dtype=torch.bfloat16) * 0.4)(B, H, Sk, Dh)), 'wq': _w((lambda *s: torch.randn(*s, dtype=torch.bfloat16) * 3.2)(D, H * Dh) * D ** (-0.5)), 'wo': _w((lambda *s: torch.randn(*s, dtype=torch.bfloat16) * 0.4)(H * Dh, D) * (H * Dh) ** (-0.5))}
    _A_in = _A_setup()

    def _B_setup():
        B, S, D, F = (1, 2048, 512, 1792)
        Fh = F // 2
        return {'x': _w((lambda *s: torch.randn(*s, dtype=torch.bfloat16) * 0.05)(B, S, D)), 'w_in': _w((lambda *s: torch.randn(*s, dtype=torch.bfloat16) * 0.8)(D, 2 * Fh)), 'w_sp': _w(0.01 * (lambda *s: torch.randn(*s, dtype=torch.bfloat16) * 0.8)(S, S)), 'b_sp': _w(1.0 + 0.01 * (lambda *s: torch.randn(*s, dtype=torch.bfloat16) * 0.05)(S)), 'w_out': _w((lambda *s: torch.randn(*s, dtype=torch.bfloat16) * 0.05)(Fh, D))}
    _B_in = _B_setup()
    return {'A_x': _A_in['x'], 'A_k_cache': _A_in['k_cache'], 'A_v_cache': _A_in['v_cache'], 'A_wq': _A_in['wq'], 'A_wo': _A_in['wo'], 'B_x': _B_in['x'], 'B_w_in': _B_in['w_in'], 'B_w_sp': _B_in['w_sp'], 'B_b_sp': _B_in['b_sp'], 'B_w_out': _B_in['w_out'], 'c': _w((lambda *s: torch.randn(*s, dtype=torch.bfloat16) * 0.1)(1, 512) * 8.0), 'w_mod': _w((lambda *s: torch.randn(*s, dtype=torch.bfloat16) * 0.1)(512, 6 * 512) * 512 ** (-0.5) * 8.0)}

def reference(A_x, A_k_cache, A_v_cache, A_wq, A_wo, B_x, B_w_in, B_w_sp, B_b_sp, B_w_out, c, w_mod):

    def _A_ref(x, k_cache, v_cache, wq, wo):
        B, Sq, D = x.shape
        H, Dh = (32, 128)
        q = (lambda x, *d: x.permute(*d))((x @ wq).reshape(B, Sq, H, Dh), 0, 2, 1, 3)
        scores = torch.einsum('bhqd,bhkd->bhqk', q, k_cache) * Dh ** (-0.5)
        p = _softmax(scores, axis=-1)
        o = torch.einsum('bhqk,bhkd->bhqd', p, v_cache)
        return (lambda x, *d: x.permute(*d))(o, 0, 2, 1, 3).reshape(B, Sq, H * Dh) @ wo

    def _B_ref(x, w_in, w_sp, b_sp, w_out):
        B, S, D = x.shape
        F = w_in.shape[-1]
        Fh = F // 2
        z = _gelu(torch.einsum('bsd,df->bsf', x, w_in))
        z1 = z[..., :Fh].clone()
        z2 = _layernorm(z[..., Fh:], axis=-1)
        g = torch.einsum('ts,bsf->btf', w_sp, z2) + b_sp[None, :, None]
        return torch.einsum('bsf,fd->bsd', z1 * g, w_out)
    x = A_x
    mod = (_silu(c) @ w_mod).reshape(c.shape[0], 6, 1, -1)
    sa, ca, ga, sb, cb, gb = (mod[:, 0].clone(), mod[:, 1].clone(), mod[:, 2].clone(), mod[:, 3].clone(), mod[:, 4].clone(), mod[:, 5].clone())
    h = _layernorm(x, axis=-1) * (1 + ca) + sa
    x = x + ga * _A_ref(h, A_k_cache, A_v_cache, A_wq, A_wo)
    h = _layernorm(x, axis=-1) * (1 + cb) + sb
    x = x + gb * _B_ref(h, B_w_in, B_w_sp, B_b_sp, B_w_out)
    return x
```

```python
NAME = "adaLN_cond__mha_block_cached__mixer_gmlp__prompt"

KA = dict(x=0, k=8, v=16, wq=24, wo=32, bx=40, win=48, wsp=56, bsp=64, wout=72,
          c=80, wmod=88, out=96, dbg=104, ws=112)

MB = 1 << 20
WS = dict(
    mod=(0, 3072 * 4),
    h1=(1 * MB, 2048 * 512 * 2),
    q=(16 * MB, 2048 * 4096 * 2),
    o=(32 * MB, 2048 * 4096 * 2),
    x1=(48 * MB, 2048 * 512 * 2),
    h2=(50 * MB, 2048 * 512 * 2),
    z=(52 * MB, 2048 * 1792 * 2),
    z2=(60 * MB, 2048 * 896 * 2),
    u=(64 * MB, 2048 * 896 * 2),
    part=(72 * MB, 8 * 2048 * 512 * 4),
)


class Kern:
    def __init__(self, name, grid, block=(256, 1, 1), lds=0, vgpr=256, sgpr=102,
                 wg_y=False, accum=None):
        assert name.endswith("_kernel")
        self.name = name
        self.grid = grid
        self.block = block
        self.lds = lds
        self.vgpr = vgpr
        self.sgpr = sgpr
        self.wg_y = wg_y
        self.accum = accum
        self.lines = []
        self._lab = 0

    def e(self, s):
        for ln in s.strip("\n").split("\n"):
            ln = ln.strip()
            if not ln:
                continue
            if ln.endswith(":"):
                self.lines.append(ln)
            else:
                self.lines.append("    " + ln)

    def label(self, base="L"):
        self._lab += 1
        return f"{self.name[:-7]}_{base}{self._lab}"

    def load_ptr(self, sdst, key):
        self.e(f"s_load_dwordx2 s[{sdst}:{sdst+1}], s[0:1], {KA[key]}")

    def srd_from_ptr(self, srd, sptr, nbytes, off=0):
        if off:
            self.e(f"s_add_u32 s{srd}, s{sptr}, {off & 0xffffffff}")
            self.e(f"s_addc_u32 s{srd+1}, s{sptr+1}, 0")
        else:
            self.e(f"s_mov_b32 s{srd}, s{sptr}")
            self.e(f"s_mov_b32 s{srd+1}, s{sptr+1}")
        self.e(f"s_and_b32 s{srd+1}, s{srd+1}, 0xffff")
        self.e(f"s_mov_b32 s{srd+2}, {nbytes}")
        self.e(f"s_mov_b32 s{srd+3}, 0x20000")

    def srd_ws(self, srd, sws, region):
        off, size = WS[region]
        self.srd_from_ptr(srd, sws, size, off)

    def text(self):
        out = [f".globl {self.name}", ".p2align 8", f".type {self.name},@function",
               f"{self.name}:"]
        out += self.lines
        out.append("    s_endpgm")
        return "\n".join(out)

    def desc(self):
        acc = self.accum if self.accum is not None else ((self.vgpr + 3) // 4 * 4)
        d = [".p2align 6", f".amdhsa_kernel {self.name}",
             f"  .amdhsa_next_free_vgpr {self.vgpr}",
             f"  .amdhsa_next_free_sgpr {self.sgpr}",
             f"  .amdhsa_accum_offset {acc}",
             "  .amdhsa_group_segment_fixed_size 0",
             "  .amdhsa_kernarg_size 120",
             "  .amdhsa_user_sgpr_count 2",
             "  .amdhsa_user_sgpr_kernarg_segment_ptr 1",
             "  .amdhsa_system_sgpr_workgroup_id_x 1"]
        if self.wg_y:
            d.append("  .amdhsa_system_sgpr_workgroup_id_y 1")
        d.append(".end_amdhsa_kernel")
        return "\n".join(d)


def build_file(kernels, path):
    head = open(f"cdna_kernels/{NAME}.s.ref").read().split("\n")
    cm = [l for l in head if l.startswith(";") and "@launch" not in l]
    out = cm[:]
    for k in kernels:
        g, b = k.grid, k.block
        out.append(f"; @launch kernel={k.name} grid=({g[0]},{g[1]},{g[2]}) "
                   f"block=({b[0]},{b[1]},{b[2]}) lds={k.lds}")
    out.append('.amdgcn_target "amdgcn-amd-amdhsa--gfx950"')
    out.append(".text")
    for k in kernels:
        out.append(k.text())
    out.append('.section .rodata,"a"')
    for k in kernels:
        out.append(k.desc())
    txt = "\n".join(out) + "\n"
    open(path, "w").write(txt)
    return txt
```

```python
from fw import Kern, WS, KA


def attn_kernel():
    NWG = 512
    TILE = 32768
    k = Kern("attn_kernel", grid=(NWG, 1, 1), lds=2 * TILE, sgpr=64)
    e = k.e
    done = k.label("done")
    e(f"s_cmp_ge_u32 s2, {NWG}")
    e(f"s_cbranch_scc1 {done}")
    k.load_ptr(4, "k")
    k.load_ptr(6, "v")
    k.load_ptr(28, "ws")
    e("s_waitcnt lgkmcnt(0)")
    e("s_and_b32 s30, s2, 7")
    e("s_lshl_b32 s30, s30, 2")
    e("s_lshr_b32 s31, s2, 3")
    e("s_and_b32 s31, s31, 3")
    e("s_add_u32 s30, s30, s31")
    e("s_lshr_b32 s31, s2, 5")
    e("s_lshl_b32 s32, s30, 19")
    e("s_add_u32 s8, s4, s32")
    e("s_addc_u32 s9, s5, 0")
    e("s_and_b32 s9, s9, 0xffff")
    e("s_mov_b32 s10, 0x80000")
    e("s_mov_b32 s11, 0x20000")
    e("s_add_u32 s12, s6, s32")
    e("s_addc_u32 s13, s7, 0")
    e("s_and_b32 s13, s13, 0xffff")
    e("s_mov_b32 s14, 0x80000")
    e("s_mov_b32 s15, 0x20000")
    k.srd_ws(16, 28, "q")
    k.srd_ws(20, 28, "o")
    e("v_lshrrev_b32 v1, 6, v0")
    e("v_and_b32 v2, 63, v0")
    e("v_readfirstlane_b32 s35, v1")
    e("v_and_b32 v3, 31, v2")
    e("v_lshrrev_b32 v4, 5, v2")
    e("s_lshl_b32 s33, s31, 7")
    e("s_lshl_b32 s34, s35, 5")
    e("s_add_u32 s33, s33, s34")
    e("v_add_u32 v5, s33, v3")
    e("v_lshlrev_b32 v6, 13, v5")
    e("s_lshl_b32 s34, s30, 8")
    e("v_add_u32 v6, s34, v6")
    e("v_lshlrev_b32 v7, 4, v4")
    e("v_add_u32 v7, v6, v7")
    QF = 32
    for ds in range(8):
        e(f"buffer_load_dwordx4 v[{QF + 4 * ds}:{QF + 4 * ds + 3}], v7, s[16:19], 0 offen offset:{ds * 32}")
    vDK = [8, 9, 10, 11]
    vDV = 12
    e("v_lshrrev_b32 v13, 4, v2")
    e("v_and_b32 v14, 15, v2")
    e("s_lshl_b32 s34, s35, 4")
    e("v_add_u32 v15, s34, v13")
    e("v_lshlrev_b32 v15, 8, v15")
    e("v_xor_b32 v16, v14, v13")
    e("v_lshlrev_b32 v16, 4, v16")
    e(f"v_add_u32 v{vDK[0]}, v15, v16")
    for j in range(1, 4):
        e(f"v_xor_b32 v{vDK[j]}, {j << 6}, v{vDK[0]}")
    e("v_lshlrev_b32 v16, 2, v13")
    e("v_xor_b32 v16, v16, v14")
    e("v_lshlrev_b32 v16, 4, v16")
    e(f"v_add_u32 v{vDV}, v15, v16")
    vRK = list(range(16, 24))
    vRV = list(range(24, 28))
    e("v_and_b32 v13, 15, v3")
    e("v_xor_b32 v13, v13, v4")
    e("v_lshlrev_b32 v13, 4, v13")
    e("v_lshlrev_b32 v14, 8, v3")
    e(f"v_add_u32 v{vRK[0]}, v13, v14")
    for ds in range(1, 8):
        e(f"v_xor_b32 v{vRK[ds]}, {ds << 5}, v{vRK[0]}")
    e("v_lshrrev_b32 v13, 4, v2")
    e("v_and_b32 v14, 15, v2")
    e("v_lshrrev_b32 v15, 1, v13")
    e("v_lshlrev_b32 v15, 2, v15")
    e("v_lshrrev_b32 v28, 2, v14")
    e("v_add_u32 v15, v15, v28")
    e("v_lshlrev_b32 v15, 8, v15")
    e("v_and_b32 v29, 1, v14")
    e("v_lshlrev_b32 v29, 3, v29")
    e("v_add_u32 v15, v15, v29")
    e("v_and_b32 v13, 1, v13")
    e("v_lshlrev_b32 v13, 1, v13")
    e("v_and_b32 v29, 3, v14")
    e("v_lshrrev_b32 v29, 1, v29")
    e("v_add_u32 v13, v13, v29")
    e("v_lshlrev_b32 v28, 2, v28")
    for db in range(4):
        e(f"v_add_u32 v29, {4 * db}, v13")
        e("v_xor_b32 v29, v29, v28")
        e("v_lshlrev_b32 v29, 4, v29")
        e(f"v_add_u32 v{vRV[db]}, v15, v29")
        e(f"v_add_u32 v{vRV[db]}, 16384, v{vRV[db]}")
    SA = 64
    OA = 96
    PF = 160
    KF = 176
    VF = 192
    vM, vL, vT, vT2, vAl = 28, 29, 30, 31, 13
    k.vgpr = 208
    for i in range(64):
        e(f"v_mov_b32 v{OA + i}, 0")
    e(f"v_mov_b32 v{vM}, 0xff800000")
    e(f"v_mov_b32 v{vL}, 0")
    e("s_mov_b32 s40, 0x3e0b3e3b")
    import struct
    c = struct.unpack("<I", struct.pack("<f", (128 ** -0.5) * 1.4426950408889634))[0]
    e(f"s_mov_b32 s40, {c}")

    def dma(stage, soff):
        for j in range(4):
            e(f"s_lshl_b32 s36, s35, 12")
            e(f"s_add_u32 m0, s36, {stage * TILE + j * 1024}")
            e(f"s_add_u32 s36, s{soff}, {j * 1024}")
            e(f"buffer_load_dwordx4 v{vDK[j]}, s[8:11], s36 offen lds")
        for j in range(4):
            e(f"s_lshl_b32 s36, s35, 12")
            e(f"s_add_u32 m0, s36, {stage * TILE + 16384 + j * 1024}")
            e(f"s_add_u32 s36, s{soff}, {j * 1024}")
            e(f"buffer_load_dwordx4 v{vDV}, s[12:15], s36 offen lds")

    e("s_mov_b32 s41, 0")
    dma(0, 41)
    e("s_mov_b32 s42, 16")
    loop = k.label("loop")
    e(f"{loop}:")
    for half in range(2):
        st = half * TILE
        e("s_waitcnt vmcnt(0)")
        e("s_barrier")
        e("s_add_u32 s41, s41, 16384")
        if half == 0:
            dma(1, 41)
        else:
            skip = k.label("skip")
            e("s_cmp_eq_u32 s42, 1")
            e(f"s_cbranch_scc1 {skip}")
            dma(0, 41)
            e(f"{skip}:")
        seq = [(kb, ds) for kb in range(2) for ds in range(8)]
        def rdk(n):
            kb, ds = seq[n]
            r = KF + 4 * (n & 3)
            e(f"ds_read_b128 v[{r}:{r + 3}], v{vRK[ds]} offset:{st + kb * 8192}")
        for n in range(3):
            rdk(n)
        for n in range(16):
            kb, ds = seq[n]
            if n + 3 < 16:
                rdk(n + 3)
                e("s_waitcnt lgkmcnt(3)")
            else:
                e(f"s_waitcnt lgkmcnt({15 - n})")
            r = KF + 4 * (n & 3)
            a = SA + 16 * kb
            cin = "0" if ds == 0 else f"v[{a}:{a + 15}]"
            e(f"v_mfma_f32_32x32x16_bf16 v[{a}:{a + 15}], v[{r}:{r + 3}], v[{QF + 4 * ds}:{QF + 4 * ds + 3}], {cin}")
        e("s_nop 15")
        e("s_nop 7")
        e(f"v_max3_f32 v{vT}, v{SA}, v{SA + 1}, v{SA + 2}")
        for i in range(3, 31, 2):
            e(f"v_max3_f32 v{vT}, v{vT}, v{SA + i}, v{SA + i + 1}")
        e(f"v_max_f32 v{vT}, v{vT}, v{SA + 31}")
        e(f"v_mov_b32 v{vT2}, v{vT}")
        e("s_nop 1")
        e(f"v_permlane32_swap_b32 v{vT}, v{vT2}")
        e(f"v_max_f32 v{vT}, v{vT}, v{vT2}")
        e(f"v_mul_f32 v{vT}, s40, v{vT}")
        e(f"v_max_f32 v{vT}, v{vT}, v{vM}")
        e(f"v_sub_f32 v{vAl}, v{vM}, v{vT}")
        e(f"v_exp_f32 v{vAl}, v{vAl}")
        e(f"v_mov_b32 v{vM}, v{vT}")
        e(f"v_mul_f32 v{vT}, -1.0, v{vT}")
        for i in range(32):
            e(f"v_fma_f32 v{SA + i}, v{SA + i}, s40, v{vT}")
        for i in range(32):
            e(f"v_exp_f32 v{SA + i}, v{SA + i}")
        e(f"v_mul_f32 v{vL}, v{vL}, v{vAl}")
        for i in range(32):
            e(f"v_add_f32 v{vL}, v{vL}, v{SA + i}")
        for i in range(64):
            e(f"v_mul_f32 v{OA + i}, v{OA + i}, v{vAl}")
        for i in range(16):
            e(f"v_cvt_pk_bf16_f32 v{PF + i}, v{SA + 2 * i}, v{SA + 2 * i + 1}")
        seq2 = [(ks, db) for ks in range(4) for db in range(4)]
        def rdv(n):
            ks, db = seq2[n]
            r = VF + 4 * (n & 3)
            for i in range(2):
                e(f"ds_read_b64_tr_b16 v[{r + 2 * i}:{r + 2 * i + 1}], v{vRV[db]} offset:{st + (16 * ks + 8 * i) * 256}")
        for n in range(3):
            rdv(n)
        for n in range(16):
            ks, db = seq2[n]
            if n + 3 < 16:
                rdv(n + 3)
                e("s_waitcnt lgkmcnt(6)")
            else:
                e(f"s_waitcnt lgkmcnt({2 * (15 - n)})")
            r = VF + 4 * (n & 3)
            a = OA + 16 * db
            e(f"v_mfma_f32_32x32x16_bf16 v[{a}:{a + 15}], v[{r}:{r + 3}], v[{PF + 4 * ks}:{PF + 4 * ks + 3}], v[{a}:{a + 15}]")
    e("s_sub_u32 s42, s42, 1")
    e("s_cmp_lg_u32 s42, 0")
    e(f"s_cbranch_scc1 {loop}")
    e("s_nop 15")
    e("s_nop 7")
    e(f"v_mov_b32 v{vT}, v{vL}")
    e("s_nop 1")
    e(f"v_permlane32_swap_b32 v{vL}, v{vT}")
    e(f"v_add_f32 v{vL}, v{vL}, v{vT}")
    e(f"v_rcp_f32 v{vL}, v{vL}")
    e("s_nop 0")
    e("v_lshlrev_b32 v7, 3, v4")
    e("v_add_u32 v7, v6, v7")
    for db in range(4):
        for rg in range(4):
            r = OA + 16 * db + 4 * rg
            for j in range(4):
                e(f"v_mul_f32 v{r + j}, v{r + j}, v{vL}")
            e(f"v_cvt_pk_bf16_f32 v{r}, v{r}, v{r + 1}")
            e(f"v_cvt_pk_bf16_f32 v{r + 1}, v{r + 2}, v{r + 3}")
            e(f"buffer_store_dwordx2 v[{r}:{r + 1}], v7, s[20:23], 0 offen offset:{(db * 32 + 8 * rg) * 2}")
    e(f"{done}:")
    return k
```

```python
from fw import Kern, WS, KA


def gemm_kernel(name, M, N, K, a_src, lda, b_src, ldb, BM, BN, epi, dst, dst_stride,
                aux1=None, aux2=None):
    TM, TN = BM // 64, BN // 64
    ntn = N // BN
    nwg = (M // BM) * ntn
    SA = BM * 128
    RB = BN * 2
    SB = 64 * RB
    STAGE = SA + SB
    KT = K // 64
    assert KT % 2 == 0
    k = Kern(name, grid=(nwg, 1, 1), lds=2 * STAGE, sgpr=64)
    e = k.e
    done = k.label("done")
    e(f"s_cmp_ge_u32 s2, {nwg}")
    e(f"s_cbranch_scc1 {done}")
    k.load_ptr(28, "ws")
    srcs = [(a_src, 8), (b_src, 12), (dst, 16), (aux1, 20), (aux2, 24)]
    tmp = 40
    for (s, srd) in srcs:
        if s is not None and s[0] == "arg":
            k.load_ptr(tmp, s[1])
            tmp += 2
    e("s_waitcnt lgkmcnt(0)")
    tmp = 40
    for (s, srd) in srcs:
        if s is None:
            continue
        if s[0] == "arg":
            k.srd_from_ptr(srd, tmp, s[2])
            tmp += 2
        else:
            off, size = WS[s[1]]
            k.srd_from_ptr(srd, 28, size, off)
    e(f"s_mov_b32 s30, {(1 << 32) // ntn + 1}")
    e("s_mul_hi_u32 s31, s2, s30")
    e(f"s_mul_i32 s32, s31, {ntn}")
    e("s_sub_u32 s32, s2, s32")
    e(f"s_mul_i32 s33, s31, {BM}")
    e(f"s_mul_i32 s34, s32, {BN}")
    e("v_lshrrev_b32 v1, 6, v0")
    e("v_and_b32 v2, 63, v0")
    e("v_readfirstlane_b32 s35, v1")
    e("s_nop 3")
    ai = BM // 32
    bi = BN // 32
    vA = [3, 4]
    vB = 5
    e("v_lshrrev_b32 v6, 3, v2")
    e(f"s_mul_i32 s36, s35, {8 * ai}")
    e("s_add_u32 s36, s36, s33")
    e("v_add_u32 v6, s36, v6")
    e(f"v_mul_lo_u32 v6, v6, {lda}") if lda >= (1 << 24) else e(f"v_mul_u32_u24 v6, {lda}, v6")
    e("v_lshrrev_b32 v7, 4, v2")
    e("v_and_b32 v8, 7, v2")
    for p in range(2):
        e(f"v_add_u32 v9, {4 * p}, v7")
        e("v_and_b32 v9, 7, v9")
        e("v_xor_b32 v9, v9, v8")
        e("v_lshlrev_b32 v9, 4, v9")
        e(f"v_add_u32 v{vA[p]}, v6, v9")
    if BN == 128:
        rows_per = 4
        e("v_lshrrev_b32 v6, 4, v2")
        e("v_and_b32 v8, 15, v2")
        e("v_lshlrev_b32 v9, 2, v6")
        e("v_xor_b32 v9, v9, v8")
    else:
        rows_per = 8
        e("v_lshrrev_b32 v6, 3, v2")
        e("v_and_b32 v8, 7, v2")
        e("v_lshrrev_b32 v9, 4, v2")
        e("v_and_b32 v9, 1, v9")
        e("v_lshlrev_b32 v9, 2, v9")
        e("v_xor_b32 v9, v9, v8")
    e(f"s_mul_i32 s36, s35, {rows_per * bi}")
    e("v_add_u32 v6, s36, v6")
    e(f"v_mul_u32_u24 v6, {ldb}, v6")
    e("v_lshlrev_b32 v9, 4, v9")
    e("v_add_u32 v6, v6, v9")
    e("s_lshl_b32 s36, s34, 1")
    e(f"v_add_u32 v{vB}, s36, v6")
    e("s_lshr_b32 s37, s35, 1")
    e("s_and_b32 s38, s35, 1")
    vRA = [10, 11, 12, 13]
    vRB = [14, 15]
    e("v_and_b32 v6, 31, v2")
    e("v_lshrrev_b32 v7, 5, v2")
    e(f"s_mul_i32 s36, s37, {TM * 32}")
    e("v_add_u32 v8, s36, v6")
    e("v_lshrrev_b32 v9, 1, v8")
    e("v_and_b32 v9, 7, v9")
    e("v_xor_b32 v9, v9, v7")
    e("v_lshlrev_b32 v9, 4, v9")
    e("v_lshlrev_b32 v8, 7, v8")
    e(f"v_add_u32 v{vRA[0]}, v8, v9")
    for kk in range(1, 4):
        e(f"v_xor_b32 v{vRA[kk]}, {kk * 32}, v{vRA[0]}")
    e("v_lshrrev_b32 v6, 4, v2")
    e("v_and_b32 v7, 15, v2")
    e("v_lshrrev_b32 v8, 1, v6")
    e("v_lshlrev_b32 v8, 3, v8")
    e("v_lshrrev_b32 v9, 2, v7")
    e("v_add_u32 v8, v8, v9")
    e(f"v_mul_u32_u24 v8, {RB}, v8")
    e("v_and_b32 v6, 1, v6")
    e("v_lshlrev_b32 v6, 1, v6")
    e("v_and_b32 v16, 3, v7")
    e("v_lshrrev_b32 v16, 1, v16")
    e("v_add_u32 v6, v6, v16")
    e(f"s_mul_i32 s36, s38, {TN * 4}")
    e("v_add_u32 v6, s36, v6")
    if BN == 128:
        e("v_lshlrev_b32 v9, 2, v9")
    else:
        e("v_lshrrev_b32 v9, 1, v9")
        e("v_lshlrev_b32 v9, 2, v9")
    e("v_and_b32 v16, 1, v7")
    e("v_lshlrev_b32 v16, 3, v16")
    e("v_add_u32 v8, v8, v16")
    for tn in range(TN):
        e(f"v_add_u32 v16, {4 * tn}, v6")
        e("v_xor_b32 v16, v16, v9")
        e("v_lshlrev_b32 v16, 4, v16")
        e(f"v_add_u32 v{vRB[tn]}, v8, v16")
        e(f"v_add_u32 v{vRB[tn]}, {SA}, v{vRB[tn]}")
    FR = 20
    nfr = (TM + TN) * 4
    ACC = FR + 2 * nfr
    ACC = (ACC + 3) // 4 * 4
    nacc = TM * TN * 16
    k.vgpr = ACC + nacc
    for i in range(nacc):
        e(f"v_mov_b32 v{ACC + i}, 0")

    def acc(tm, tn):
        return ACC + (tm * TN + tn) * 16

    def dma(stage, ksoff):
        for j in range(ai):
            e(f"s_mul_i32 s36, s35, {ai * 1024}")
            e(f"s_add_u32 m0, s36, {stage * STAGE + j * 1024}")
            e(f"s_add_u32 s36, s{ksoff}, {j * 8 * lda}")
            e(f"buffer_load_dwordx4 v{vA[j & 1]}, s[8:11], s36 offen lds")
        for j in range(bi):
            e(f"s_mul_i32 s36, s35, {bi * 1024}")
            e(f"s_add_u32 m0, s36, {stage * STAGE + SA + j * 1024}")
            e(f"s_add_u32 s36, s{ksoff + 1}, {j * rows_per * ldb}")
            e(f"buffer_load_dwordx4 v{vB}, s[12:15], s36 offen lds")

    def read_frags(fs, stage, kk):
        base = FR + fs * nfr
        for tm in range(TM):
            r = base + tm * 4
            e(f"ds_read_b128 v[{r}:{r + 3}], v{vRA[kk]} offset:{stage * STAGE + tm * 4096}")
        for tn in range(TN):
            r = base + TM * 4 + tn * 4
            for i in range(2):
                e(f"ds_read_b64_tr_b16 v[{r + 2 * i}:{r + 2 * i + 1}], v{vRB[tn]} offset:{stage * STAGE + (kk * 16 + 4 * i) * RB}")

    def mfmas(fs):
        base = FR + fs * nfr
        for tm in range(TM):
            for tn in range(TN):
                a = acc(tm, tn)
                ra = base + tm * 4
                rb = base + TM * 4 + tn * 4
                e(f"v_mfma_f32_32x32x16_bf16 v[{a}:{a + 15}], v[{rb}:{rb + 3}], v[{ra}:{ra + 3}], v[{a}:{a + 15}]")

    nrd = TM + 2 * TN
    nld = ai + bi
    e("s_mov_b32 s40, 0")
    e("s_mov_b32 s41, 0")
    dma(0, 40)
    e(f"s_mov_b32 s42, {KT // 2}")
    loop = k.label("loop")
    e(f"{loop}:")
    for half in range(2):
        e("s_waitcnt vmcnt(0)")
        e("s_barrier")
        e("s_add_u32 s40, s40, 128")
        e(f"s_add_u32 s41, s41, {64 * ldb}")
        if half == 0:
            dma(1, 40)
        else:
            skip = k.label("skip")
            e("s_cmp_eq_u32 s42, 1")
            e(f"s_cbranch_scc1 {skip}")
            dma(0, 40)
            e(f"{skip}:")
        read_frags(0, half, 0)
        for kk in range(4):
            if kk < 3:
                read_frags((kk + 1) & 1, half, kk + 1)
                e(f"s_waitcnt lgkmcnt({nrd})")
            else:
                e("s_waitcnt lgkmcnt(0)")
            mfmas(kk & 1)
    e("s_sub_u32 s42, s42, 1")
    e("s_cmp_lg_u32 s42, 0")
    e(f"s_cbranch_scc1 {loop}")
    e("s_nop 15")
    e("s_nop 7")
    e("v_and_b32 v6, 31, v2")
    e(f"s_mul_i32 s36, s37, {TM * 32}")
    e("s_add_u32 s36, s36, s33")
    e("v_add_u32 v6, s36, v6")
    e("v_lshrrev_b32 v7, 5, v2")
    e("v_lshlrev_b32 v7, 2, v7")
    e(f"s_mul_i32 s36, s38, {TN * 32}")
    e("s_add_u32 s36, s36, s34")
    e("v_add_u32 v7, s36, v7")
    for tm in range(TM):
        for tn in range(TN):
            a = acc(tm, tn)
            for rg in range(4):
                r = [a + 4 * rg + j for j in range(4)]
                ncol = tn * 32 + 8 * rg
                e(f"v_add_u32 v8, {tm * 32}, v6")
                e(f"v_add_u32 v9, {ncol}, v7")
                epi(k, r, tm, tn, rg)
                e(f"v_mul_u32_u24 v8, {dst_stride}, v8")
                e("v_lshlrev_b32 v9, 1, v9")
                e("v_add_u32 v8, v8, v9")
                e(f"buffer_store_dwordx2 v[{r[0]}:{r[1]}], v8, s[16:19], 0 offen")
    e(f"{done}:")
    return k


def rnd(k, r0, r1):
    k.e(f"v_cvt_pk_bf16_f32 v{r0}, v{r0}, v{r1}")
    k.e(f"v_and_b32 v{r1}, 0xffff0000, v{r0}")
    k.e(f"v_lshlrev_b32 v{r0}, 16, v{r0}")


def pack(k, r):
    k.e(f"v_cvt_pk_bf16_f32 v{r[0]}, v{r[0]}, v{r[1]}")
    k.e(f"v_cvt_pk_bf16_f32 v{r[1]}, v{r[2]}, v{r[3]}")


def epi_plain(k, r, tm, tn, rg):
    pack(k, r)


def make_epi_resid(gidx, xstride):
    def epi(k, r, tm, tn, rg):
        e = k.e
        e(f"v_lshlrev_b32 v16, 2, v9")
        e(f"s_mov_b32 s36, {gidx * 2048}")
        e(f"buffer_load_dwordx4 v[16:19], v16, s[20:23], s36 offen")
        e(f"v_mul_u32_u24 v3, {xstride}, v8")
        e("v_lshlrev_b32 v4, 1, v9")
        e("v_add_u32 v3, v3, v4")
        e("buffer_load_dwordx2 v[4:5], v3, s[24:27], 0 offen")
        rnd(k, r[0], r[1])
        rnd(k, r[2], r[3])
        e("s_waitcnt vmcnt(1)")
        for j in range(4):
            e(f"v_mul_f32 v{r[j]}, v{r[j]}, v{16 + j}")
        rnd(k, r[0], r[1])
        rnd(k, r[2], r[3])
        e("s_waitcnt vmcnt(0)")
        e("v_lshlrev_b32 v16, 16, v4")
        e("v_and_b32 v17, 0xffff0000, v4")
        e("v_lshlrev_b32 v18, 16, v5")
        e("v_and_b32 v19, 0xffff0000, v5")
        for j in range(4):
            e(f"v_add_f32 v{r[j]}, v{r[j]}, v{16 + j}")
        pack(k, r)
    return epi


def epi_gelu(k, r, tm, tn, rg):
    e = k.e
    rnd(k, r[0], r[1])
    rnd(k, r[2], r[3])
    for j in range(4):
        y = r[j]
        e(f"v_mul_f32 v16, v{y}, v{y}")
        e(f"v_mul_f32 v16, v16, v{y}")
        e("v_mul_f32 v16, 0x3d372713, v16")
        e(f"v_add_f32 v16, v16, v{y}")
        e("v_mul_f32 v16, 0xc0135761, v16")
        e("v_exp_f32 v16, v16")
        e("s_nop 0")
        e("v_add_f32 v16, 1.0, v16")
        e("v_rcp_f32 v16, v16")
        e("s_nop 0")
        e(f"v_mul_f32 v{y}, v{y}, v16")
    pack(k, r)


def epi_gate(k, r, tm, tn, rg):
    e = k.e
    e("v_lshlrev_b32 v16, 1, v8")
    e("buffer_load_ushort v16, v16, s[20:23], 0 offen")
    e("v_mul_u32_u24 v3, 3584, v8")
    e("v_lshlrev_b32 v4, 1, v9")
    e("v_add_u32 v3, v3, v4")
    e("buffer_load_dwordx2 v[4:5], v3, s[24:27], 0 offen")
    rnd(k, r[0], r[1])
    rnd(k, r[2], r[3])
    e("s_waitcnt vmcnt(1)")
    e("v_lshlrev_b32 v16, 16, v16")
    for j in range(4):
        e(f"v_add_f32 v{r[j]}, v{r[j]}, v16")
    rnd(k, r[0], r[1])
    rnd(k, r[2], r[3])
    e("s_waitcnt vmcnt(0)")
    e("v_lshlrev_b32 v16, 16, v4")
    e("v_and_b32 v17, 0xffff0000, v4")
    e("v_lshlrev_b32 v18, 16, v5")
    e("v_and_b32 v19, 0xffff0000, v5")
    for j in range(4):
        e(f"v_mul_f32 v{r[j]}, v{r[j]}, v{16 + j}")
    pack(k, r)
```

```python
from fw import Kern, WS, KA

LOG2E = 0x3fb8aa3b


def butterfly_addrs(k, vlane, vbase):
    for i in range(6):
        k.e(f"v_xor_b32 v{vbase+i}, {1 << i}, v{vlane}")
        k.e(f"v_lshlrev_b32 v{vbase+i}, 2, v{vbase+i}")


def wave_sum(k, vsrc, vtmp, vaddr):
    for i in range(6):
        k.e(f"ds_bpermute_b32 v{vtmp}, v{vaddr+i}, v{vsrc}")
        k.e("s_waitcnt lgkmcnt(0)")
        k.e(f"v_add_f32 v{vsrc}, v{vsrc}, v{vtmp}")


def mod_kernel():
    k = Kern("mod_kernel", grid=(48, 1, 1), lds=4096, vgpr=128, sgpr=40)
    e = k.e
    e("s_cmp_ge_u32 s2, 48")
    e("s_cbranch_scc1 mod_done")
    k.load_ptr(4, "c")
    k.load_ptr(6, "wmod")
    k.load_ptr(8, "ws")
    e("s_waitcnt lgkmcnt(0)")
    k.srd_from_ptr(12, 4, 1024)
    k.srd_from_ptr(16, 6, 512 * 3072 * 2)
    k.srd_ws(20, 8, "mod")
    e("v_lshlrev_b32 v2, 2, v0")
    e("buffer_load_dword v1, v2, s[12:15], 0 offen")
    e("s_waitcnt vmcnt(0)")
    e("v_lshlrev_b32 v4, 16, v1")
    e("v_and_b32 v5, 0xffff0000, v1")
    for r in (4, 5):
        e(f"v_mul_f32 v3, 0xbfb8aa3b, v{r}")
        e("v_exp_f32 v3, v3")
        e("s_nop 0")
        e("v_add_f32 v3, 1.0, v3")
        e("v_rcp_f32 v3, v3")
        e("s_nop 0")
        e(f"v_mul_f32 v3, v{r}, v3")
        e("v_cvt_pk_bf16_f32 v3, v3, v3")
        e(f"v_lshlrev_b32 v{r}, 16, v3")
    e("v_lshlrev_b32 v2, 3, v0")
    e("ds_write_b64 v2, v[4:5]")
    e("s_waitcnt lgkmcnt(0)")
    e("s_barrier")
    e("v_lshrrev_b32 v6, 6, v0")
    e("v_and_b32 v7, 63, v0")
    e("s_lshl_b32 s24, s2, 7")
    e("v_lshlrev_b32 v8, 1, v7")
    e("v_add_u32 v8, s24, v8")
    e("v_mul_u32_u24 v9, 128*6144, v6")
    e("v_add_u32 v8, v8, v9")
    e("v_lshlrev_b32 v9, 9, v6")
    e("v_mov_b32 v10, 0")
    e("s_mov_b32 s25, 0")
    for ch in range(4):
        for i in range(32):
            e(f"buffer_load_ushort v{32+i}, v8, s[16:19], s25 offen")
            e("s_add_u32 s25, s25, 6144")
        for i in range(8):
            e(f"ds_read_b128 v[{64+4*i}:{67+4*i}], v9 offset:{(ch*32+4*i)*4}")
        e("s_waitcnt vmcnt(0) lgkmcnt(0)")
        for i in range(32):
            e(f"v_lshlrev_b32 v{32+i}, 16, v{32+i}")
        for i in range(32):
            e(f"v_fmac_f32 v10, v{32+i}, v{64+i}")
    e("v_lshlrev_b32 v11, 2, v0")
    e("ds_write_b32 v11, v10 offset:2048")
    e("s_waitcnt lgkmcnt(0)")
    e("s_barrier")
    e("v_readfirstlane_b32 s26, v6")
    e("s_nop 3")
    e("s_cmp_lg_u32 s26, 0")
    e("s_cbranch_scc1 mod_done")
    e("v_lshlrev_b32 v11, 2, v7")
    e("ds_read_b32 v12, v11 offset:2048")
    e("ds_read_b32 v13, v11 offset:2304")
    e("ds_read_b32 v14, v11 offset:2560")
    e("ds_read_b32 v15, v11 offset:2816")
    e("s_waitcnt lgkmcnt(0)")
    e("v_add_f32 v12, v12, v13")
    e("v_add_f32 v14, v14, v15")
    e("v_add_f32 v12, v12, v14")
    e("v_cvt_pk_bf16_f32 v12, v12, v12")
    e("v_lshlrev_b32 v12, 16, v12")
    e("s_lshl_b32 s24, s2, 8")
    e("v_add_u32 v11, s24, v11")
    e("buffer_store_dword v12, v11, s[20:23], 0 offen")
    e("mod_done:")
    return k


def ln_kernel(name, src, src_stride, src_coloff, ncols, dst, dst_stride, affine=None):
    nl = ncols // 128
    k = Kern(name, grid=(512, 1, 1), vgpr=96, sgpr=40)
    e = k.e
    done = k.label("done")
    e("s_cmp_ge_u32 s2, 512")
    e(f"s_cbranch_scc1 {done}")
    k.load_ptr(8, "ws")
    if src[0] == "arg":
        k.load_ptr(4, src[1])
    e("s_waitcnt lgkmcnt(0)")
    if src[0] == "arg":
        k.srd_from_ptr(12, 4, src[2])
    else:
        k.srd_ws(12, 8, src[1])
    k.srd_ws(16, 8, dst)
    k.srd_ws(20, 8, "mod")
    e("v_lshrrev_b32 v1, 6, v0")
    e("v_and_b32 v2, 63, v0")
    e("s_lshl_b32 s24, s2, 2")
    e("v_add_u32 v1, s24, v1")
    e(f"v_mul_u32_u24 v3, {src_stride}, v1")
    e("v_lshlrev_b32 v4, 2, v2")
    e("v_add_u32 v3, v3, v4")
    e(f"v_mul_u32_u24 v5, {dst_stride}, v1")
    e("v_add_u32 v5, v5, v4")
    for j in range(nl):
        e(f"buffer_load_dword v{10+j}, v3, s[12:15], 0 offen offset:{src_coloff + j*256}")
    if affine:
        e("v_lshlrev_b32 v6, 3, v2")
        e(f"s_mov_b32 s25, {affine[0]*2048}")
        e(f"s_mov_b32 s26, {affine[1]*2048}")
        for j in range(nl):
            e(f"buffer_load_dwordx2 v[{60+2*j}:{61+2*j}], v6, s[20:23], s25 offen offset:{j*512}")
            e(f"buffer_load_dwordx2 v[{76+2*j}:{77+2*j}], v6, s[20:23], s26 offen offset:{j*512}")
    butterfly_addrs(k, 2, 50)
    e(f"s_waitcnt vmcnt({2*nl if affine else 0})")
    for j in range(nl):
        e(f"v_lshlrev_b32 v{20+2*j}, 16, v{10+j}")
        e(f"v_and_b32 v{21+2*j}, 0xffff0000, v{10+j}")
    e("v_add_f32 v7, v20, v21")
    for j in range(1, nl):
        e(f"v_add_f32 v7, v7, v{20+2*j}")
        e(f"v_add_f32 v7, v7, v{21+2*j}")
    wave_sum(k, 7, 8, 50)
    e(f"v_mul_f32 v7, {1.0/ncols!r}, v7")
    for j in range(2 * nl):
        e(f"v_sub_f32 v{20+j}, v{20+j}, v7")
    e("v_mul_f32 v9, v20, v20")
    for j in range(1, 2 * nl):
        e(f"v_fmac_f32 v9, v{20+j}, v{20+j}")
    wave_sum(k, 9, 8, 50)
    e(f"v_mul_f32 v9, {1.0/ncols!r}, v9")
    e("v_add_f32 v9, 0x3727c5ac, v9")
    e("v_rsq_f32 v9, v9")
    e("s_nop 0")
    if affine:
        e("s_waitcnt vmcnt(0)")
    for j in range(nl):
        a, b = 20 + 2 * j, 21 + 2 * j
        e(f"v_mul_f32 v{a}, v{a}, v9")
        e(f"v_mul_f32 v{b}, v{b}, v9")
        e(f"v_cvt_pk_bf16_f32 v{a}, v{a}, v{b}")
        if affine:
            e(f"v_and_b32 v{b}, 0xffff0000, v{a}")
            e(f"v_lshlrev_b32 v{a}, 16, v{a}")
            c0, c1, s0, s1 = 60 + 2 * j, 61 + 2 * j, 76 + 2 * j, 77 + 2 * j
            e(f"v_add_f32 v{c0}, 1.0, v{c0}")
            e(f"v_add_f32 v{c1}, 1.0, v{c1}")
            e(f"v_cvt_pk_bf16_f32 v{c0}, v{c0}, v{c1}")
            e(f"v_and_b32 v{c1}, 0xffff0000, v{c0}")
            e(f"v_lshlrev_b32 v{c0}, 16, v{c0}")
            e(f"v_mul_f32 v{a}, v{a}, v{c0}")
            e(f"v_mul_f32 v{b}, v{b}, v{c1}")
            e(f"v_cvt_pk_bf16_f32 v{a}, v{a}, v{b}")
            e(f"v_and_b32 v{b}, 0xffff0000, v{a}")
            e(f"v_lshlrev_b32 v{a}, 16, v{a}")
            e(f"v_add_f32 v{a}, v{a}, v{s0}")
            e(f"v_add_f32 v{b}, v{b}, v{s1}")
            e(f"v_cvt_pk_bf16_f32 v{a}, v{a}, v{b}")
        e(f"buffer_store_dword v{a}, v5, s[16:19], 0 offen offset:{j*256}")
    e(f"{done}:")
    return k
```

```python
import sys
sys.path.insert(0, "work")
from fw import build_file, NAME
from k_small import mod_kernel, ln_kernel
from k_gemm import gemm_kernel, epi_plain, make_epi_resid, epi_gelu, epi_gate
from k_attn import attn_kernel


def main():
    ks = [mod_kernel(),
          ln_kernel("ln1_kernel", ("arg", "x", 2048 * 512 * 2), 1024, 0, 512, "h1", 1024, affine=(1, 0)),
          gemm_kernel("qproj_kernel", 2048, 4096, 512, ("ws", "h1"), 1024, ("arg", "wq", 512 * 4096 * 2), 8192,
                      128, 128, epi_plain, ("ws", "q"), 8192),
          attn_kernel(),
          gemm_kernel("wo_kernel", 2048, 512, 4096, ("ws", "o"), 8192, ("arg", "wo", 4096 * 512 * 2), 1024,
                      64, 64, make_epi_resid(2, 1024), ("ws", "x1"), 1024,
                      aux1=("ws", "mod"), aux2=("arg", "x", 2048 * 512 * 2)),
          ln_kernel("ln2_kernel", ("ws", "x1"), 1024, 0, 512, "h2", 1024, affine=(4, 3)),
          gemm_kernel("win_kernel", 2048, 1792, 512, ("ws", "h2"), 1024, ("arg", "win", 512 * 1792 * 2), 3584,
                      128, 128, epi_gelu, ("ws", "z"), 3584),
          ln_kernel("ln3_kernel", ("ws", "z"), 3584, 1792, 896, "z2", 1792),
          gemm_kernel("wsp_kernel", 2048, 896, 2048, ("arg", "wsp", 2048 * 2048 * 2), 4096, ("ws", "z2"), 1792,
                      128, 64, epi_gate, ("ws", "u"), 1792,
                      aux1=("arg", "bsp", 4096), aux2=("ws", "z")),
          gemm_kernel("wout_kernel", 2048, 512, 896, ("ws", "u"), 1792, ("arg", "wout", 896 * 512 * 2), 1024,
                      64, 64, make_epi_resid(5, 1024), ("arg", "out", 2048 * 512 * 2), 1024,
                      aux1=("ws", "mod"), aux2=("ws", "x1")),
          ]
    build_file(ks, f"cdna_kernels/{NAME}.s")


if __name__ == "__main__":
    main()
```

```python
from fw import Kern, WS, KA


def attn_kernel():
    NWG = 512
    TILE = 32768
    k = Kern("attn_kernel", grid=(NWG, 1, 1), lds=2 * TILE, sgpr=64)
    e = k.e
    done = k.label("done")
    e(f"s_cmp_ge_u32 s2, {NWG}")
    e(f"s_cbranch_scc1 {done}")
    k.load_ptr(4, "k")
    k.load_ptr(6, "v")
    k.load_ptr(28, "ws")
    e("s_waitcnt lgkmcnt(0)")
    e("s_and_b32 s30, s2, 7")
    e("s_lshl_b32 s30, s30, 2")
    e("s_lshr_b32 s31, s2, 3")
    e("s_and_b32 s31, s31, 3")
    e("s_add_u32 s30, s30, s31")
    e("s_lshr_b32 s31, s2, 5")
    e("s_lshl_b32 s32, s30, 19")
    e("s_add_u32 s8, s4, s32")
    e("s_addc_u32 s9, s5, 0")
    e("s_and_b32 s9, s9, 0xffff")
    e("s_mov_b32 s10, 0x80000")
    e("s_mov_b32 s11, 0x20000")
    e("s_add_u32 s12, s6, s32")
    e("s_addc_u32 s13, s7, 0")
    e("s_and_b32 s13, s13, 0xffff")
    e("s_mov_b32 s14, 0x80000")
    e("s_mov_b32 s15, 0x20000")
    k.srd_ws(16, 28, "q")
    k.srd_ws(20, 28, "o")
    e("v_lshrrev_b32 v1, 6, v0")
    e("v_and_b32 v2, 63, v0")
    e("v_readfirstlane_b32 s35, v1")
    e("v_and_b32 v3, 31, v2")
    e("v_lshrrev_b32 v4, 5, v2")
    e("s_lshl_b32 s33, s31, 7")
    e("s_lshl_b32 s34, s35, 5")
    e("s_add_u32 s33, s33, s34")
    e("v_add_u32 v5, s33, v3")
    e("v_lshlrev_b32 v6, 13, v5")
    e("s_lshl_b32 s34, s30, 8")
    e("v_add_u32 v6, s34, v6")
    e("v_lshlrev_b32 v7, 4, v4")
    e("v_add_u32 v7, v6, v7")
    QF = 32
    for ds in range(8):
        e(f"buffer_load_dwordx4 v[{QF + 4 * ds}:{QF + 4 * ds + 3}], v7, s[16:19], 0 offen offset:{ds * 32}")
    vDK = [8, 9, 10, 11]
    vDV = 12
    e("v_lshrrev_b32 v13, 4, v2")
    e("v_and_b32 v14, 15, v2")
    e("s_lshl_b32 s34, s35, 4")
    e("v_add_u32 v15, s34, v13")
    e("v_lshlrev_b32 v15, 8, v15")
    e("v_xor_b32 v16, v14, v13")
    e("v_lshlrev_b32 v16, 4, v16")
    e(f"v_add_u32 v{vDK[0]}, v15, v16")
    for j in range(1, 4):
        e(f"v_xor_b32 v{vDK[j]}, {j << 6}, v{vDK[0]}")
    e("v_lshlrev_b32 v16, 2, v13")
    e("v_xor_b32 v16, v16, v14")
    e("v_lshlrev_b32 v16, 4, v16")
    e(f"v_add_u32 v{vDV}, v15, v16")
    vRK = list(range(16, 24))
    vRV = list(range(24, 28))
    e("v_and_b32 v13, 15, v3")
    e("v_xor_b32 v13, v13, v4")
    e("v_lshlrev_b32 v13, 4, v13")
    e("v_lshlrev_b32 v14, 8, v3")
    e(f"v_add_u32 v{vRK[0]}, v13, v14")
    for ds in range(1, 8):
        e(f"v_xor_b32 v{vRK[ds]}, {ds << 5}, v{vRK[0]}")
    e("v_lshrrev_b32 v13, 4, v2")
    e("v_and_b32 v14, 15, v2")
    e("v_lshrrev_b32 v15, 1, v13")
    e("v_lshlrev_b32 v15, 2, v15")
    e("v_lshrrev_b32 v28, 2, v14")
    e("v_add_u32 v15, v15, v28")
    e("v_lshlrev_b32 v15, 8, v15")
    e("v_and_b32 v29, 1, v14")
    e("v_lshlrev_b32 v29, 3, v29")
    e("v_add_u32 v15, v15, v29")
    e("v_and_b32 v13, 1, v13")
    e("v_lshlrev_b32 v13, 1, v13")
    e("v_and_b32 v29, 3, v14")
    e("v_lshrrev_b32 v29, 1, v29")
    e("v_add_u32 v13, v13, v29")
    e("v_lshlrev_b32 v28, 2, v28")
    for db in range(4):
        e(f"v_add_u32 v29, {4 * db}, v13")
        e("v_xor_b32 v29, v29, v28")
        e("v_lshlrev_b32 v29, 4, v29")
        e(f"v_add_u32 v{vRV[db]}, v15, v29")
        e(f"v_add_u32 v{vRV[db]}, 16384, v{vRV[db]}")
    SAB = [64, 208]
    OA = 96
    PF = 160
    KF = 176
    VF = 192
    vM, vL, vT, vT2, vAl = 28, 29, 30, 31, 13
    k.vgpr = 240
    for i in range(64):
        e(f"v_mov_b32 v{OA + i}, 0")
    e(f"v_mov_b32 v{vM}, 0xff800000")
    e(f"v_mov_b32 v{vL}, 0")
    import struct
    c = struct.unpack("<I", struct.pack("<f", (128 ** -0.5) * 1.4426950408889634))[0]
    e(f"s_mov_b32 s40, {c}")

    def dma_k(stage, soff):
        for j in range(4):
            e(f"s_lshl_b32 s36, s35, 12")
            e(f"s_add_u32 m0, s36, {stage * TILE + j * 1024}")
            e(f"s_add_u32 s36, s{soff}, {j * 1024}")
            e(f"buffer_load_dwordx4 v{vDK[j]}, s[8:11], s36 offen lds")

    def dma_v(stage, soff):
        for j in range(4):
            e(f"s_lshl_b32 s36, s35, 12")
            e(f"s_add_u32 m0, s36, {stage * TILE + 16384 + j * 1024}")
            e(f"s_add_u32 s36, s{soff}, {j * 1024}")
            e(f"buffer_load_dwordx4 v{vDV}, s[12:15], s36 offen lds")

    def qk_stream(SA, st):
        out = []
        seq = [(kb, ds) for kb in range(2) for ds in range(8)]
        def rdk(n):
            kb, ds = seq[n]
            r = KF + 4 * (n & 3)
            return f"ds_read_b128 v[{r}:{r + 3}], v{vRK[ds]} offset:{st + kb * 8192}"
        pre = [rdk(n) for n in range(3)]
        for n in range(16):
            kb, ds = seq[n]
            grp = []
            if n + 3 < 16:
                grp += [rdk(n + 3), "s_waitcnt lgkmcnt(3)"]
            else:
                grp += [f"s_waitcnt lgkmcnt({15 - n})"]
            r = KF + 4 * (n & 3)
            a = SA + 16 * kb
            cin = "0" if ds == 0 else f"v[{a}:{a + 15}]"
            grp.append(f"v_mfma_f32_32x32x16_bf16 v[{a}:{a + 15}], v[{r}:{r + 3}], v[{QF + 4 * ds}:{QF + 4 * ds + 3}], {cin}")
            out.append(grp)
        return pre, out

    def softmax_stream(SA):
        o = []
        o.append(f"v_max3_f32 v{vT}, v{SA}, v{SA + 1}, v{SA + 2}")
        for i in range(3, 31, 2):
            o.append(f"v_max3_f32 v{vT}, v{vT}, v{SA + i}, v{SA + i + 1}")
        o.append(f"v_max_f32 v{vT}, v{vT}, v{SA + 31}")
        o.append(f"v_mov_b32 v{vT2}, v{vT}")
        o.append("s_nop 1")
        o.append(f"v_permlane32_swap_b32 v{vT}, v{vT2}")
        o.append(f"v_max_f32 v{vT}, v{vT}, v{vT2}")
        o.append(f"v_mul_f32 v{vT}, s40, v{vT}")
        o.append(f"v_max_f32 v{vT}, v{vT}, v{vM}")
        o.append(f"v_sub_f32 v{vAl}, v{vM}, v{vT}")
        o.append(f"v_exp_f32 v{vAl}, v{vAl}")
        o.append(f"v_mov_b32 v{vM}, v{vT}")
        o.append(f"v_mul_f32 v{vT}, -1.0, v{vT}")
        for i in range(32):
            o.append(f"v_fma_f32 v{SA + i}, v{SA + i}, s40, v{vT}")
            if i >= 2:
                o.append(f"v_exp_f32 v{SA + i - 2}, v{SA + i - 2}")
        o.append(f"v_exp_f32 v{SA + 30}, v{SA + 30}")
        o.append(f"v_exp_f32 v{SA + 31}, v{SA + 31}")
        o.append(f"v_mul_f32 v{vL}, v{vL}, v{vAl}")
        for i in range(64):
            o.append(f"v_mul_f32 v{OA + i}, v{OA + i}, v{vAl}")
        for i in range(32):
            o.append(f"v_add_f32 v{vL}, v{vL}, v{SA + i}")
        for i in range(16):
            o.append(f"v_cvt_pk_bf16_f32 v{PF + i}, v{SA + 2 * i}, v{SA + 2 * i + 1}")
        return o

    def pv(st):
        seq2 = [(ks, db) for ks in range(4) for db in range(4)]
        def rdv(n):
            ks, db = seq2[n]
            r = VF + 4 * (n & 3)
            for i in range(2):
                e(f"ds_read_b64_tr_b16 v[{r + 2 * i}:{r + 2 * i + 1}], v{vRV[db]} offset:{st + (16 * ks + 8 * i) * 256}")
        for n in range(3):
            rdv(n)
        for n in range(16):
            ks, db = seq2[n]
            if n + 3 < 16:
                rdv(n + 3)
                e("s_waitcnt lgkmcnt(6)")
            else:
                e(f"s_waitcnt lgkmcnt({2 * (15 - n)})")
            r = VF + 4 * (n & 3)
            a = OA + 16 * db
            e(f"v_mfma_f32_32x32x16_bf16 v[{a}:{a + 15}], v[{r}:{r + 3}], v[{PF + 4 * ks}:{PF + 4 * ks + 3}], v[{a}:{a + 15}]")

    e("s_mov_b32 s41, 0")
    e("s_mov_b32 s43, 0")
    dma_k(0, 41)
    e("s_add_u32 s41, s41, 16384")
    dma_k(1, 41)
    e("s_add_u32 s41, s41, 16384")
    dma_v(0, 43)
    e("s_add_u32 s43, s43, 16384")
    e("s_waitcnt vmcnt(8)")
    e("s_barrier")
    pre, grps = qk_stream(SAB[0], 0)
    for x in pre:
        e(x)
    for g in grps:
        for x in g:
            e(x)
    e("s_mov_b32 s42, 16")
    loop = k.label("loop")
    e(f"{loop}:")
    for half in range(2):
        cur, nxt = SAB[half], SAB[half ^ 1]
        e("s_waitcnt vmcnt(0)")
        e("s_barrier")
        dma_k(half, 41)
        e("s_add_u32 s41, s41, 16384")
        dma_v(half ^ 1, 43)
        e("s_add_u32 s43, s43, 16384")
        pre, grps = qk_stream(nxt, (half ^ 1) * TILE)
        sm = softmax_stream(cur)
        for x in pre:
            e(x)
        per = (len(sm) + 15) // 16
        idx = 0
        for g in grps:
            for x in g:
                e(x)
            for x in sm[idx:idx + per]:
                e(x)
            idx += per
        pv(half * TILE)
    e("s_sub_u32 s42, s42, 1")
    e("s_cmp_lg_u32 s42, 0")
    e(f"s_cbranch_scc1 {loop}")
    e("s_nop 15")
    e("s_nop 7")
    e(f"v_mov_b32 v{vT}, v{vL}")
    e("s_nop 1")
    e(f"v_permlane32_swap_b32 v{vL}, v{vT}")
    e(f"v_add_f32 v{vL}, v{vL}, v{vT}")
    e(f"v_rcp_f32 v{vL}, v{vL}")
    e("s_nop 0")
    e("v_lshlrev_b32 v7, 3, v4")
    e("v_add_u32 v7, v6, v7")
    for db in range(4):
        for rg in range(4):
            r = OA + 16 * db + 4 * rg
            for j in range(4):
                e(f"v_mul_f32 v{r + j}, v{r + j}, v{vL}")
            e(f"v_cvt_pk_bf16_f32 v{r}, v{r}, v{r + 1}")
            e(f"v_cvt_pk_bf16_f32 v{r + 1}, v{r + 2}, v{r + 3}")
            e(f"buffer_store_dwordx2 v[{r}:{r + 1}], v7, s[20:23], 0 offen offset:{(db * 32 + 8 * rg) * 2}")
    e(f"{done}:")
    return k
```

```python
from fw import Kern, WS, KA


def gemm_kernel(name, M, N, K, a_src, lda, b_src, ldb, BM, BN, epi, dst, dst_stride,
                aux1=None, aux2=None, D=2, LA=1):
    TM, TN = BM // 64, BN // 64
    ntn = N // BN
    nwg = (M // BM) * ntn
    SA = BM * 128
    RB = BN * 2
    SB = 64 * RB
    STAGE = SA + SB
    KT = K // 64
    k = Kern(name, grid=(nwg, 1, 1), lds=D * STAGE, sgpr=64)
    e = k.e
    done = k.label("done")
    e(f"s_cmp_ge_u32 s2, {nwg}")
    e(f"s_cbranch_scc1 {done}")
    k.load_ptr(28, "ws")
    srcs = [(a_src, 8), (b_src, 12), (dst, 16), (aux1, 20), (aux2, 24)]
    tmp = 40
    for (s, srd) in srcs:
        if s is not None and s[0] == "arg":
            k.load_ptr(tmp, s[1])
            tmp += 2
    e("s_waitcnt lgkmcnt(0)")
    tmp = 40
    for (s, srd) in srcs:
        if s is None:
            continue
        if s[0] == "arg":
            k.srd_from_ptr(srd, tmp, s[2])
            tmp += 2
        else:
            off, size = WS[s[1]]
            k.srd_from_ptr(srd, 28, size, off)
    e(f"s_mov_b32 s30, {(1 << 32) // ntn + 1}")
    e("s_mul_hi_u32 s31, s2, s30")
    e(f"s_mul_i32 s32, s31, {ntn}")
    e("s_sub_u32 s32, s2, s32")
    e(f"s_mul_i32 s33, s31, {BM}")
    e(f"s_mul_i32 s34, s32, {BN}")
    e("v_lshrrev_b32 v1, 6, v0")
    e("v_and_b32 v2, 63, v0")
    e("v_readfirstlane_b32 s35, v1")
    e("s_nop 3")
    ai = BM // 32
    bi = BN // 32
    vA = [3, 4]
    vB = 5
    e("v_lshrrev_b32 v6, 3, v2")
    e(f"s_mul_i32 s36, s35, {8 * ai}")
    e("s_add_u32 s36, s36, s33")
    e("v_add_u32 v6, s36, v6")
    e(f"v_mul_lo_u32 v6, v6, {lda}") if lda >= (1 << 24) else e(f"v_mul_u32_u24 v6, {lda}, v6")
    e("v_lshrrev_b32 v7, 4, v2")
    e("v_and_b32 v8, 7, v2")
    for p in range(2):
        e(f"v_add_u32 v9, {4 * p}, v7")
        e("v_and_b32 v9, 7, v9")
        e("v_xor_b32 v9, v9, v8")
        e("v_lshlrev_b32 v9, 4, v9")
        e(f"v_add_u32 v{vA[p]}, v6, v9")
    if BN == 128:
        rows_per = 4
        e("v_lshrrev_b32 v6, 4, v2")
        e("v_and_b32 v8, 15, v2")
        e("v_lshlrev_b32 v9, 2, v6")
        e("v_xor_b32 v9, v9, v8")
    else:
        rows_per = 8
        e("v_lshrrev_b32 v6, 3, v2")
        e("v_and_b32 v8, 7, v2")
        e("v_lshrrev_b32 v9, 4, v2")
        e("v_and_b32 v9, 1, v9")
        e("v_lshlrev_b32 v9, 2, v9")
        e("v_xor_b32 v9, v9, v8")
    e(f"s_mul_i32 s36, s35, {rows_per * bi}")
    e("v_add_u32 v6, s36, v6")
    e(f"v_mul_u32_u24 v6, {ldb}, v6")
    e("v_lshlrev_b32 v9, 4, v9")
    e("v_add_u32 v6, v6, v9")
    e("s_lshl_b32 s36, s34, 1")
    e(f"v_add_u32 v{vB}, s36, v6")
    e("s_lshr_b32 s37, s35, 1")
    e("s_and_b32 s38, s35, 1")
    vRA = [10, 11, 12, 13]
    vRB = [14, 15]
    e("v_and_b32 v6, 31, v2")
    e("v_lshrrev_b32 v7, 5, v2")
    e(f"s_mul_i32 s36, s37, {TM * 32}")
    e("v_add_u32 v8, s36, v6")
    e("v_lshrrev_b32 v9, 1, v8")
    e("v_and_b32 v9, 7, v9")
    e("v_xor_b32 v9, v9, v7")
    e("v_lshlrev_b32 v9, 4, v9")
    e("v_lshlrev_b32 v8, 7, v8")
    e(f"v_add_u32 v{vRA[0]}, v8, v9")
    for kk in range(1, 4):
        e(f"v_xor_b32 v{vRA[kk]}, {kk * 32}, v{vRA[0]}")
    e("v_lshrrev_b32 v6, 4, v2")
    e("v_and_b32 v7, 15, v2")
    e("v_lshrrev_b32 v8, 1, v6")
    e("v_lshlrev_b32 v8, 3, v8")
    e("v_lshrrev_b32 v9, 2, v7")
    e("v_add_u32 v8, v8, v9")
    e(f"v_mul_u32_u24 v8, {RB}, v8")
    e("v_and_b32 v6, 1, v6")
    e("v_lshlrev_b32 v6, 1, v6")
    e("v_and_b32 v16, 3, v7")
    e("v_lshrrev_b32 v16, 1, v16")
    e("v_add_u32 v6, v6, v16")
    e(f"s_mul_i32 s36, s38, {TN * 4}")
    e("v_add_u32 v6, s36, v6")
    if BN == 128:
        e("v_lshlrev_b32 v9, 2, v9")
    else:
        e("v_lshrrev_b32 v9, 1, v9")
        e("v_lshlrev_b32 v9, 2, v9")
    e("v_and_b32 v16, 1, v7")
    e("v_lshlrev_b32 v16, 3, v16")
    e("v_add_u32 v8, v8, v16")
    for tn in range(TN):
        e(f"v_add_u32 v16, {4 * tn}, v6")
        e("v_xor_b32 v16, v16, v9")
        e("v_lshlrev_b32 v16, 4, v16")
        e(f"v_add_u32 v{vRB[tn]}, v8, v16")
        e(f"v_add_u32 v{vRB[tn]}, {SA}, v{vRB[tn]}")
    vRA2 = [20, 21, 22, 23]
    vRB2 = [24, 25]
    for kk in range(4):
        e(f"v_add_u32 v{vRA2[kk]}, 0x10000, v{vRA[kk]}")
    for tn in range(TN):
        e(f"v_add_u32 v{vRB2[tn]}, 0x10000, v{vRB[tn]}")
    FR = 28
    nfr = (TM + TN) * 4
    ACC = FR + 2 * nfr
    ACC = (ACC + 3) // 4 * 4
    nacc = TM * TN * 16
    k.vgpr = ACC + nacc
    for i in range(nacc):
        e(f"v_mov_b32 v{ACC + i}, 0")

    def acc(tm, tn):
        return ACC + (tm * TN + tn) * 16

    def dma(stage, ksoff):
        for j in range(ai):
            e(f"s_mul_i32 s36, s35, {ai * 1024}")
            e(f"s_add_u32 m0, s36, {stage * STAGE + j * 1024}")
            e(f"s_add_u32 s36, s{ksoff}, {j * 8 * lda}")
            e(f"buffer_load_dwordx4 v{vA[j & 1]}, s[8:11], s36 offen lds")
        for j in range(bi):
            e(f"s_mul_i32 s36, s35, {bi * 1024}")
            e(f"s_add_u32 m0, s36, {stage * STAGE + SA + j * 1024}")
            e(f"s_add_u32 s36, s{ksoff + 1}, {j * rows_per * ldb}")
            e(f"buffer_load_dwordx4 v{vB}, s[12:15], s36 offen lds")

    def read_frags(fs, stage, kk):
        base = FR + fs * nfr
        for tm in range(TM):
            r = base + tm * 4
            off = stage * STAGE + tm * 4096
            va = vRA[kk] if off < 65536 else vRA2[kk]
            e(f"ds_read_b128 v[{r}:{r + 3}], v{va} offset:{off & 65535}")
        for tn in range(TN):
            r = base + TM * 4 + tn * 4
            for i in range(2):
                off = stage * STAGE + (kk * 16 + 4 * i) * RB
                vb = vRB[tn] if off < 65536 else vRB2[tn]
                e(f"ds_read_b64_tr_b16 v[{r + 2 * i}:{r + 2 * i + 1}], v{vb} offset:{off & 65535}")

    def mfmas(fs):
        base = FR + fs * nfr
        for tm in range(TM):
            for tn in range(TN):
                a = acc(tm, tn)
                ra = base + tm * 4
                rb = base + TM * 4 + tn * 4
                e(f"v_mfma_f32_32x32x16_bf16 v[{a}:{a + 15}], v[{rb}:{rb + 3}], v[{ra}:{ra + 3}], v[{a}:{a + 15}]")

    nrd = TM + 2 * TN
    nld = ai + bi
    e("s_mov_b32 s40, 0")
    e("s_mov_b32 s41, 0")

    def issue(stage):
        dma(stage, 40)
        e("s_add_u32 s40, s40, 128")
        e(f"s_add_u32 s41, s41, {64 * ldb}")

    def compute(stage, nxt):
        for kk in range(4):
            if kk < 3:
                read_frags((kk + 1) & 1, stage, kk + 1)
                e(f"s_waitcnt lgkmcnt({nrd})")
            elif nxt is not None:
                read_frags(0, nxt, 0)
                e(f"s_waitcnt lgkmcnt({nrd})")
            else:
                e("s_waitcnt lgkmcnt(0)")
            mfmas(kk & 1)

    for t in range(D - 1):
        issue(t)
    if LA:
        e(f"s_waitcnt vmcnt({(D - 2) * nld})")
        e("s_barrier")
        read_frags(0, 0, 0)
    steady = KT - D + 1
    nloop = steady // D
    t = 0
    if nloop > 0:
        e(f"s_mov_b32 s42, {nloop}")
        loop = k.label("loop")
        e(f"{loop}:")
        for i in range(D):
            e(f"s_waitcnt vmcnt({(D - 2 - LA) * nld})")
            e("s_barrier")
            issue((i + D - 1) % D)
            if not LA:
                read_frags(0, i, 0)
            compute(i, (i + 1) % D if LA else None)
        e("s_sub_u32 s42, s42, 1")
        e("s_cmp_lg_u32 s42, 0")
        e(f"s_cbranch_scc1 {loop}")
        t = nloop * D
    while t < KT:
        rem = KT - 1 - t
        if rem > 0 or not LA:
            e(f"s_waitcnt vmcnt({max(0, min(rem - LA, D - 2 - LA)) * nld})")
            e("s_barrier")
        if t + D - 1 < KT:
            issue((t + D - 1) % D)
        if not LA:
            read_frags(0, t % D, 0)
        compute(t % D, (t + 1) % D if (rem > 0 and LA) else None)
        t += 1
    e("s_nop 15")
    e("s_nop 7")
    e("v_and_b32 v6, 31, v2")
    e(f"s_mul_i32 s36, s37, {TM * 32}")
    e("s_add_u32 s36, s36, s33")
    e("v_add_u32 v6, s36, v6")
    e("v_lshrrev_b32 v7, 5, v2")
    e("v_lshlrev_b32 v7, 2, v7")
    e(f"s_mul_i32 s36, s38, {TN * 32}")
    e("s_add_u32 s36, s36, s34")
    e("v_add_u32 v7, s36, v7")
    for tm in range(TM):
        for tn in range(TN):
            a = acc(tm, tn)
            for rg in range(4):
                r = [a + 4 * rg + j for j in range(4)]
                ncol = tn * 32 + 8 * rg
                e(f"v_add_u32 v8, {tm * 32}, v6")
                e(f"v_add_u32 v9, {ncol}, v7")
                epi(k, r, tm, tn, rg)
                e(f"v_mul_u32_u24 v8, {dst_stride}, v8")
                e("v_lshlrev_b32 v9, 1, v9")
                e("v_add_u32 v8, v8, v9")
                e(f"buffer_store_dwordx2 v[{r[0]}:{r[1]}], v8, s[16:19], 0 offen")
    e(f"{done}:")
    return k


def rnd(k, r0, r1):
    k.e(f"v_cvt_pk_bf16_f32 v{r0}, v{r0}, v{r1}")
    k.e(f"v_and_b32 v{r1}, 0xffff0000, v{r0}")
    k.e(f"v_lshlrev_b32 v{r0}, 16, v{r0}")


def pack(k, r):
    k.e(f"v_cvt_pk_bf16_f32 v{r[0]}, v{r[0]}, v{r[1]}")
    k.e(f"v_cvt_pk_bf16_f32 v{r[1]}, v{r[2]}, v{r[3]}")


def epi_plain(k, r, tm, tn, rg):
    pack(k, r)


def make_epi_resid(gidx, xstride):
    def epi(k, r, tm, tn, rg):
        e = k.e
        e(f"v_lshlrev_b32 v16, 2, v9")
        e(f"s_mov_b32 s36, {gidx * 2048}")
        e(f"buffer_load_dwordx4 v[16:19], v16, s[20:23], s36 offen")
        e(f"v_mul_u32_u24 v3, {xstride}, v8")
        e("v_lshlrev_b32 v4, 1, v9")
        e("v_add_u32 v3, v3, v4")
        e("buffer_load_dwordx2 v[4:5], v3, s[24:27], 0 offen")
        rnd(k, r[0], r[1])
        rnd(k, r[2], r[3])
        e("s_waitcnt vmcnt(1)")
        for j in range(4):
            e(f"v_mul_f32 v{r[j]}, v{r[j]}, v{16 + j}")
        rnd(k, r[0], r[1])
        rnd(k, r[2], r[3])
        e("s_waitcnt vmcnt(0)")
        e("v_lshlrev_b32 v16, 16, v4")
        e("v_and_b32 v17, 0xffff0000, v4")
        e("v_lshlrev_b32 v18, 16, v5")
        e("v_and_b32 v19, 0xffff0000, v5")
        for j in range(4):
            e(f"v_add_f32 v{r[j]}, v{r[j]}, v{16 + j}")
        pack(k, r)
    return epi


def epi_gelu(k, r, tm, tn, rg):
    e = k.e
    rnd(k, r[0], r[1])
    rnd(k, r[2], r[3])
    for j in range(4):
        y = r[j]
        e(f"v_mul_f32 v16, v{y}, v{y}")
        e(f"v_mul_f32 v16, v16, v{y}")
        e("v_mul_f32 v16, 0x3d372713, v16")
        e(f"v_add_f32 v16, v16, v{y}")
        e("v_mul_f32 v16, 0xc0135761, v16")
        e("v_exp_f32 v16, v16")
        e("s_nop 0")
        e("v_add_f32 v16, 1.0, v16")
        e("v_rcp_f32 v16, v16")
        e("s_nop 0")
        e(f"v_mul_f32 v{y}, v{y}, v16")
    pack(k, r)


def epi_gate(k, r, tm, tn, rg):
    e = k.e
    e("v_lshlrev_b32 v16, 1, v8")
    e("buffer_load_ushort v16, v16, s[20:23], 0 offen")
    e("v_mul_u32_u24 v3, 3584, v8")
    e("v_lshlrev_b32 v4, 1, v9")
    e("v_add_u32 v3, v3, v4")
    e("buffer_load_dwordx2 v[4:5], v3, s[24:27], 0 offen")
    rnd(k, r[0], r[1])
    rnd(k, r[2], r[3])
    e("s_waitcnt vmcnt(1)")
    e("v_lshlrev_b32 v16, 16, v16")
    for j in range(4):
        e(f"v_add_f32 v{r[j]}, v{r[j]}, v16")
    rnd(k, r[0], r[1])
    rnd(k, r[2], r[3])
    e("s_waitcnt vmcnt(0)")
    e("v_lshlrev_b32 v16, 16, v4")
    e("v_and_b32 v17, 0xffff0000, v4")
    e("v_lshlrev_b32 v18, 16, v5")
    e("v_and_b32 v19, 0xffff0000, v5")
    for j in range(4):
        e(f"v_mul_f32 v{r[j]}, v{r[j]}, v{16 + j}")
    pack(k, r)
```

```python
import sys
sys.path.insert(0, "work")
from fw import build_file, NAME
from k_small import mod_kernel, ln_kernel
from k_gemm import gemm_kernel, epi_plain, make_epi_resid, epi_gelu, epi_gate
from k_attn import attn_kernel


def main():
    ks = [mod_kernel(),
          ln_kernel("ln1_kernel", ("arg", "x", 2048 * 512 * 2), 1024, 0, 512, "h1", 1024, affine=(1, 0)),
          gemm_kernel("qproj_kernel", 2048, 4096, 512, ("ws", "h1"), 1024, ("arg", "wq", 512 * 4096 * 2), 8192,
                      128, 128, epi_plain, ("ws", "q"), 8192, D=3, LA=0),
          attn_kernel(),
          gemm_kernel("wo_kernel", 2048, 512, 4096, ("ws", "o"), 8192, ("arg", "wo", 4096 * 512 * 2), 1024,
                      64, 64, make_epi_resid(2, 1024), ("ws", "x1"), 1024,
                      aux1=("ws", "mod"), aux2=("arg", "x", 2048 * 512 * 2), D=5, LA=0),
          ln_kernel("ln2_kernel", ("ws", "x1"), 1024, 0, 512, "h2", 1024, affine=(4, 3)),
          gemm_kernel("win_kernel", 2048, 1792, 512, ("ws", "h2"), 1024, ("arg", "win", 512 * 1792 * 2), 3584,
                      128, 128, epi_gelu, ("ws", "z"), 3584, D=3, LA=0),
          ln_kernel("ln3_kernel", ("ws", "z"), 3584, 1792, 896, "z2", 1792),
          gemm_kernel("wsp_kernel", 2048, 896, 2048, ("arg", "wsp", 2048 * 2048 * 2), 4096, ("ws", "z2"), 1792,
                      128, 64, epi_gate, ("ws", "u"), 1792,
                      aux1=("arg", "bsp", 4096), aux2=("ws", "z"), D=3, LA=0),
          gemm_kernel("wout_kernel", 2048, 512, 896, ("ws", "u"), 1792, ("arg", "wout", 896 * 512 * 2), 1024,
                      64, 64, make_epi_resid(5, 1024), ("arg", "out", 2048 * 512 * 2), 1024,
                      aux1=("ws", "mod"), aux2=("ws", "x1"), D=5, LA=0),
          ]
    build_file(ks, f"cdna_kernels/{NAME}.s")


if __name__ == "__main__":
    main()
```

```python
from fw import Kern, WS, KA


def attn_kernel(name='attn_kernel', dbg=()):
    NWG = 512
    TILE = 32768
    k = Kern(name, grid=(NWG, 1, 1), lds=2 * TILE, sgpr=64)
    e = k.e
    done = k.label("done")
    e(f"s_cmp_ge_u32 s2, {NWG}")
    e(f"s_cbranch_scc1 {done}")
    k.load_ptr(4, "k")
    k.load_ptr(6, "v")
    k.load_ptr(28, "ws")
    e("s_waitcnt lgkmcnt(0)")
    e("s_and_b32 s30, s2, 7")
    e("s_lshl_b32 s30, s30, 2")
    e("s_lshr_b32 s31, s2, 3")
    e("s_and_b32 s31, s31, 3")
    e("s_add_u32 s30, s30, s31")
    e("s_lshr_b32 s31, s2, 5")
    e("s_lshl_b32 s32, s30, 19")
    e("s_add_u32 s8, s4, s32")
    e("s_addc_u32 s9, s5, 0")
    e("s_and_b32 s9, s9, 0xffff")
    e("s_mov_b32 s10, 0x80000")
    e("s_mov_b32 s11, 0x20000")
    e("s_add_u32 s12, s6, s32")
    e("s_addc_u32 s13, s7, 0")
    e("s_and_b32 s13, s13, 0xffff")
    e("s_mov_b32 s14, 0x80000")
    e("s_mov_b32 s15, 0x20000")
    k.srd_ws(16, 28, "q")
    k.srd_ws(20, 28, "o")
    e("v_lshrrev_b32 v1, 6, v0")
    e("v_and_b32 v2, 63, v0")
    e("v_readfirstlane_b32 s35, v1")
    e("v_and_b32 v3, 31, v2")
    e("v_lshrrev_b32 v4, 5, v2")
    e("s_lshl_b32 s33, s31, 7")
    e("s_lshl_b32 s34, s35, 5")
    e("s_add_u32 s33, s33, s34")
    e("v_add_u32 v5, s33, v3")
    e("v_lshlrev_b32 v6, 13, v5")
    e("s_lshl_b32 s34, s30, 8")
    e("v_add_u32 v6, s34, v6")
    e("v_lshlrev_b32 v7, 4, v4")
    e("v_add_u32 v7, v6, v7")
    QF = 32
    for ds in range(8):
        e(f"buffer_load_dwordx4 v[{QF + 4 * ds}:{QF + 4 * ds + 3}], v7, s[16:19], 0 offen offset:{ds * 32}")
    vDK = [8, 9, 10, 11]
    vDV = 12
    e("v_lshrrev_b32 v13, 4, v2")
    e("v_and_b32 v14, 15, v2")
    e("s_lshl_b32 s34, s35, 4")
    e("v_add_u32 v15, s34, v13")
    e("v_lshlrev_b32 v15, 8, v15")
    e("v_xor_b32 v16, v14, v13")
    e("v_lshlrev_b32 v16, 4, v16")
    e(f"v_add_u32 v{vDK[0]}, v15, v16")
    for j in range(1, 4):
        e(f"v_xor_b32 v{vDK[j]}, {j << 6}, v{vDK[0]}")
    e("v_lshlrev_b32 v16, 2, v13")
    e("v_xor_b32 v16, v16, v14")
    e("v_lshlrev_b32 v16, 4, v16")
    e(f"v_add_u32 v{vDV}, v15, v16")
    vRK = list(range(16, 24))
    vRV = list(range(24, 28))
    e("v_and_b32 v13, 15, v3")
    e("v_xor_b32 v13, v13, v4")
    e("v_lshlrev_b32 v13, 4, v13")
    e("v_lshlrev_b32 v14, 8, v3")
    e(f"v_add_u32 v{vRK[0]}, v13, v14")
    for ds in range(1, 8):
        e(f"v_xor_b32 v{vRK[ds]}, {ds << 5}, v{vRK[0]}")
    e("v_lshrrev_b32 v13, 4, v2")
    e("v_and_b32 v14, 15, v2")
    e("v_lshrrev_b32 v15, 1, v13")
    e("v_lshlrev_b32 v15, 2, v15")
    e("v_lshrrev_b32 v28, 2, v14")
    e("v_add_u32 v15, v15, v28")
    e("v_lshlrev_b32 v15, 8, v15")
    e("v_and_b32 v29, 1, v14")
    e("v_lshlrev_b32 v29, 3, v29")
    e("v_add_u32 v15, v15, v29")
    e("v_and_b32 v13, 1, v13")
    e("v_lshlrev_b32 v13, 1, v13")
    e("v_and_b32 v29, 3, v14")
    e("v_lshrrev_b32 v29, 1, v29")
    e("v_add_u32 v13, v13, v29")
    e("v_lshlrev_b32 v28, 2, v28")
    for db in range(4):
        e(f"v_add_u32 v29, {4 * db}, v13")
        e("v_xor_b32 v29, v29, v28")
        e("v_lshlrev_b32 v29, 4, v29")
        e(f"v_add_u32 v{vRV[db]}, v15, v29")
        e(f"v_add_u32 v{vRV[db]}, 16384, v{vRV[db]}")
    SAB = [64, 208]
    OA = 96
    PF = 160
    KF = 176
    VF = 192
    vM, vL, vT, vT2, vAl = 28, 29, 30, 31, 13
    k.vgpr = 240
    for i in range(64):
        e(f"v_mov_b32 v{OA + i}, 0")
    e(f"v_mov_b32 v{vM}, 0xff800000")
    e(f"v_mov_b32 v{vL}, 0")
    import struct
    c = struct.unpack("<I", struct.pack("<f", (128 ** -0.5) * 1.4426950408889634))[0]
    e(f"s_mov_b32 s40, {c}")

    def dma_k(stage, soff):
        if "nodma" in dbg:
            return
        for j in range(4):
            e(f"s_lshl_b32 s36, s35, 12")
            e(f"s_add_u32 m0, s36, {stage * TILE + j * 1024}")
            e(f"s_add_u32 s36, s{soff}, {j * 1024}")
            e(f"buffer_load_dwordx4 v{vDK[j]}, s[8:11], s36 offen lds")

    def dma_v(stage, soff):
        if "nodma" in dbg:
            return
        for j in range(4):
            e(f"s_lshl_b32 s36, s35, 12")
            e(f"s_add_u32 m0, s36, {stage * TILE + 16384 + j * 1024}")
            e(f"s_add_u32 s36, s{soff}, {j * 1024}")
            e(f"buffer_load_dwordx4 v{vDV}, s[12:15], s36 offen lds")

    def qk_stream(SA, st):
        out = []
        seq = [(kb, ds) for kb in range(2) for ds in range(8)]
        def rdk(n):
            kb, ds = seq[n]
            r = KF + 4 * (n & 3)
            return f"ds_read_b128 v[{r}:{r + 3}], v{vRK[ds]} offset:{st + kb * 8192}"
        pre = [rdk(n) for n in range(3)]
        for n in range(16):
            kb, ds = seq[n]
            grp = []
            if n + 3 < 16:
                grp += [rdk(n + 3), "s_waitcnt lgkmcnt(3)"]
            else:
                grp += [f"s_waitcnt lgkmcnt({15 - n})"]
            r = KF + 4 * (n & 3)
            a = SA + 16 * kb
            cin = "0" if ds == 0 else f"v[{a}:{a + 15}]"
            grp.append(f"v_mfma_f32_32x32x16_bf16 v[{a}:{a + 15}], v[{r}:{r + 3}], v[{QF + 4 * ds}:{QF + 4 * ds + 3}], {cin}")
            out.append(grp)
        return pre, out

    def softmax_stream(SA):
        o = []
        o.append(f"v_max3_f32 v{vT}, v{SA}, v{SA + 1}, v{SA + 2}")
        for i in range(3, 31, 2):
            o.append(f"v_max3_f32 v{vT}, v{vT}, v{SA + i}, v{SA + i + 1}")
        o.append(f"v_max_f32 v{vT}, v{vT}, v{SA + 31}")
        o.append(f"v_mov_b32 v{vT2}, v{vT}")
        o.append("s_nop 1")
        o.append(f"v_permlane32_swap_b32 v{vT}, v{vT2}")
        o.append(f"v_max_f32 v{vT}, v{vT}, v{vT2}")
        o.append(f"v_mul_f32 v{vT}, s40, v{vT}")
        o.append(f"v_max_f32 v{vT}, v{vT}, v{vM}")
        o.append(f"v_sub_f32 v{vAl}, v{vM}, v{vT}")
        o.append(f"v_exp_f32 v{vAl}, v{vAl}")
        o.append(f"v_mov_b32 v{vM}, v{vT}")
        o.append(f"v_mul_f32 v{vT}, -1.0, v{vT}")
        for i in range(32):
            o.append(f"v_fma_f32 v{SA + i}, v{SA + i}, s40, v{vT}")
            if i >= 2:
                o.append(f"v_exp_f32 v{SA + i - 2}, v{SA + i - 2}")
        o.append(f"v_exp_f32 v{SA + 30}, v{SA + 30}")
        o.append(f"v_exp_f32 v{SA + 31}, v{SA + 31}")
        o.append(f"v_mul_f32 v{vL}, v{vL}, v{vAl}")
        for i in range(64):
            o.append(f"v_mul_f32 v{OA + i}, v{OA + i}, v{vAl}")
        for i in range(32):
            o.append(f"v_add_f32 v{vL}, v{vL}, v{SA + i}")
        for i in range(16):
            o.append(f"v_cvt_pk_bf16_f32 v{PF + i}, v{SA + 2 * i}, v{SA + 2 * i + 1}")
        return o

    def pv(st):
        seq2 = [(ks, db) for ks in range(4) for db in range(4)]
        def rdv(n):
            ks, db = seq2[n]
            r = VF + 4 * (n & 3)
            for i in range(2):
                if "nolds" in dbg:
                    continue
                e(f"ds_read_b64_tr_b16 v[{r + 2 * i}:{r + 2 * i + 1}], v{vRV[db]} offset:{st + (16 * ks + 8 * i) * 256}")
        for n in range(3):
            rdv(n)
        for n in range(16):
            ks, db = seq2[n]
            if n + 3 < 16:
                rdv(n + 3)
                e("s_waitcnt lgkmcnt(6)")
            else:
                e(f"s_waitcnt lgkmcnt({2 * (15 - n)})")
            r = VF + 4 * (n & 3)
            a = OA + 16 * db
            if "nopv" not in dbg:
                e(f"v_mfma_f32_32x32x16_bf16 v[{a}:{a + 15}], v[{r}:{r + 3}], v[{PF + 4 * ks}:{PF + 4 * ks + 3}], v[{a}:{a + 15}]")

    e("s_mov_b32 s41, 0")
    e("s_mov_b32 s43, 0")
    dma_k(0, 41)
    e("s_add_u32 s41, s41, 16384")
    dma_k(1, 41)
    e("s_add_u32 s41, s41, 16384")
    dma_v(0, 43)
    e("s_add_u32 s43, s43, 16384")
    e("s_waitcnt vmcnt(8)")
    e("s_barrier")
    pre, grps = qk_stream(SAB[0], 0)
    for x in pre:
        e(x)
    for g in grps:
        for x in g:
            e(x)
    e("s_mov_b32 s42, 16")
    loop = k.label("loop")
    e(f"{loop}:")
    for half in range(2):
        cur, nxt = SAB[half], SAB[half ^ 1]
        e("s_waitcnt vmcnt(0)")
        e("s_barrier")
        dma_k(half, 41)
        e("s_add_u32 s41, s41, 16384")
        dma_v(half ^ 1, 43)
        e("s_add_u32 s43, s43, 16384")
        pre, grps = qk_stream(nxt, (half ^ 1) * TILE)
        sm = softmax_stream(cur)
        if "nosm" in dbg:
            sm = sm[-16:]
        if "noresc" in dbg:
            sm = [x for x in sm if not (x.startswith("v_mul_f32") and int(x.split()[1][1:-1]) >= OA and int(x.split()[1][1:-1]) < OA + 64)]
        if "noexp" in dbg:
            sm = [x for x in sm if not x.startswith("v_exp")]
        if "noqk" in dbg:
            grps = [[y for y in g if not y.startswith("v_mfma")] for g in grps]
        if "nolds" in dbg:
            pre = []
            grps = [[y for y in g if y.startswith("v_mfma")] for g in grps]
        for x in pre:
            e(x)
        per = (len(sm) + 15) // 16
        idx = 0
        for g in grps:
            for x in g:
                e(x)
            for x in sm[idx:idx + per]:
                e(x)
            idx += per
        pv(half * TILE)
    e("s_sub_u32 s42, s42, 1")
    e("s_cmp_lg_u32 s42, 0")
    e(f"s_cbranch_scc1 {loop}")
    e("s_nop 15")
    e("s_nop 7")
    e(f"v_mov_b32 v{vT}, v{vL}")
    e("s_nop 1")
    e(f"v_permlane32_swap_b32 v{vL}, v{vT}")
    e(f"v_add_f32 v{vL}, v{vL}, v{vT}")
    e(f"v_rcp_f32 v{vL}, v{vL}")
    e("s_nop 0")
    e("v_lshlrev_b32 v7, 3, v4")
    e("v_add_u32 v7, v6, v7")
    for db in range(4):
        for rg in range(4):
            r = OA + 16 * db + 4 * rg
            for j in range(4):
                e(f"v_mul_f32 v{r + j}, v{r + j}, v{vL}")
            e(f"v_cvt_pk_bf16_f32 v{r}, v{r}, v{r + 1}")
            e(f"v_cvt_pk_bf16_f32 v{r + 1}, v{r + 2}, v{r + 3}")
            e(f"buffer_store_dwordx2 v[{r}:{r + 1}], v7, s[20:23], 0 offen offset:{(db * 32 + 8 * rg) * 2}")
    e(f"{done}:")
    return k
```

```python
from fw import Kern, WS, KA


def gemm_kernel(name, M, N, K, a_src, lda, b_src, ldb, BM, BN, epi, dst, dst_stride,
                aux1=None, aux2=None, D=2, LA=1, dbg=(), ksplit=1):
    TM, TN = BM // 64, BN // 64
    ntn = N // BN
    nwg = (M // BM) * ntn * ksplit
    SA = BM * 128
    RB = BN * 2
    SB = 64 * RB
    STAGE = SA + SB
    KT = K // 64 // ksplit
    k = Kern(name, grid=(nwg, 1, 1), lds=D * STAGE, sgpr=64)
    e = k.e
    done = k.label("done")
    e(f"s_cmp_ge_u32 s2, {nwg}")
    e(f"s_cbranch_scc1 {done}")
    k.load_ptr(28, "ws")
    srcs = [(a_src, 8), (b_src, 12), (dst, 16), (aux1, 20), (aux2, 24)]
    tmp = 40
    for (s, srd) in srcs:
        if s is not None and s[0] == "arg":
            k.load_ptr(tmp, s[1])
            tmp += 2
    e("s_waitcnt lgkmcnt(0)")
    tmp = 40
    for (s, srd) in srcs:
        if s is None:
            continue
        if s[0] == "arg":
            k.srd_from_ptr(srd, tmp, s[2])
            tmp += 2
        else:
            off, size = WS[s[1]]
            k.srd_from_ptr(srd, 28, size, off)
    e(f"s_and_b32 s39, s2, {ksplit - 1}")
    e(f"s_lshr_b32 s2, s2, {ksplit.bit_length() - 1}")
    e(f"s_mov_b32 s30, {(1 << 32) // ntn + 1}")
    e("s_mul_hi_u32 s31, s2, s30")
    e(f"s_mul_i32 s32, s31, {ntn}")
    e("s_sub_u32 s32, s2, s32")
    e(f"s_mul_i32 s33, s31, {BM}")
    e(f"s_mul_i32 s34, s32, {BN}")
    e("v_lshrrev_b32 v1, 6, v0")
    e("v_and_b32 v2, 63, v0")
    e("v_readfirstlane_b32 s35, v1")
    e("s_nop 3")
    ai = BM // 32
    bi = BN // 32
    vA = [3, 4]
    vB = 5
    e("v_lshrrev_b32 v6, 3, v2")
    e(f"s_mul_i32 s36, s35, {8 * ai}")
    e("s_add_u32 s36, s36, s33")
    e("v_add_u32 v6, s36, v6")
    e(f"v_mul_lo_u32 v6, v6, {lda}") if lda >= (1 << 24) else e(f"v_mul_u32_u24 v6, {lda}, v6")
    e("v_lshrrev_b32 v7, 4, v2")
    e("v_and_b32 v8, 7, v2")
    for p in range(2):
        e(f"v_add_u32 v9, {4 * p}, v7")
        e("v_and_b32 v9, 7, v9")
        e("v_xor_b32 v9, v9, v8")
        e("v_lshlrev_b32 v9, 4, v9")
        e(f"v_add_u32 v{vA[p]}, v6, v9")
    if BN == 128:
        rows_per = 4
        e("v_lshrrev_b32 v6, 4, v2")
        e("v_and_b32 v8, 15, v2")
        e("v_lshlrev_b32 v9, 2, v6")
        e("v_xor_b32 v9, v9, v8")
    else:
        rows_per = 8
        e("v_lshrrev_b32 v6, 3, v2")
        e("v_and_b32 v8, 7, v2")
        e("v_lshrrev_b32 v9, 4, v2")
        e("v_and_b32 v9, 1, v9")
        e("v_lshlrev_b32 v9, 2, v9")
        e("v_xor_b32 v9, v9, v8")
    e(f"s_mul_i32 s36, s35, {rows_per * bi}")
    e("v_add_u32 v6, s36, v6")
    e(f"v_mul_u32_u24 v6, {ldb}, v6")
    e("v_lshlrev_b32 v9, 4, v9")
    e("v_add_u32 v6, v6, v9")
    e("s_lshl_b32 s36, s34, 1")
    e(f"v_add_u32 v{vB}, s36, v6")
    e("s_lshr_b32 s37, s35, 1")
    e("s_and_b32 s38, s35, 1")
    vRA = [10, 11, 12, 13]
    vRB = [14, 15]
    e("v_and_b32 v6, 31, v2")
    e("v_lshrrev_b32 v7, 5, v2")
    e(f"s_mul_i32 s36, s37, {TM * 32}")
    e("v_add_u32 v8, s36, v6")
    e("v_lshrrev_b32 v9, 1, v8")
    e("v_and_b32 v9, 7, v9")
    e("v_xor_b32 v9, v9, v7")
    e("v_lshlrev_b32 v9, 4, v9")
    e("v_lshlrev_b32 v8, 7, v8")
    e(f"v_add_u32 v{vRA[0]}, v8, v9")
    for kk in range(1, 4):
        e(f"v_xor_b32 v{vRA[kk]}, {kk * 32}, v{vRA[0]}")
    e("v_lshrrev_b32 v6, 4, v2")
    e("v_and_b32 v7, 15, v2")
    e("v_lshrrev_b32 v8, 1, v6")
    e("v_lshlrev_b32 v8, 3, v8")
    e("v_lshrrev_b32 v9, 2, v7")
    e("v_add_u32 v8, v8, v9")
    e(f"v_mul_u32_u24 v8, {RB}, v8")
    e("v_and_b32 v6, 1, v6")
    e("v_lshlrev_b32 v6, 1, v6")
    e("v_and_b32 v16, 3, v7")
    e("v_lshrrev_b32 v16, 1, v16")
    e("v_add_u32 v6, v6, v16")
    e(f"s_mul_i32 s36, s38, {TN * 4}")
    e("v_add_u32 v6, s36, v6")
    if BN == 128:
        e("v_lshlrev_b32 v9, 2, v9")
    else:
        e("v_lshrrev_b32 v9, 1, v9")
        e("v_lshlrev_b32 v9, 2, v9")
    e("v_and_b32 v16, 1, v7")
    e("v_lshlrev_b32 v16, 3, v16")
    e("v_add_u32 v8, v8, v16")
    for tn in range(TN):
        e(f"v_add_u32 v16, {4 * tn}, v6")
        e("v_xor_b32 v16, v16, v9")
        e("v_lshlrev_b32 v16, 4, v16")
        e(f"v_add_u32 v{vRB[tn]}, v8, v16")
        e(f"v_add_u32 v{vRB[tn]}, {SA}, v{vRB[tn]}")
    vRA2 = [20, 21, 22, 23]
    vRB2 = [24, 25]
    for kk in range(4):
        e(f"v_add_u32 v{vRA2[kk]}, 0x10000, v{vRA[kk]}")
    for tn in range(TN):
        e(f"v_add_u32 v{vRB2[tn]}, 0x10000, v{vRB[tn]}")
    FR = 28
    nfr = (TM + TN) * 4
    ACC = FR + 2 * nfr
    ACC = (ACC + 3) // 4 * 4
    nacc = TM * TN * 16
    k.vgpr = ACC + max(nacc, 48)
    for i in range(nacc):
        e(f"v_mov_b32 v{ACC + i}, 0")

    def acc(tm, tn):
        return ACC + (tm * TN + tn) * 16

    def dma(stage, ksoff):
        if "nodma" in dbg:
            return
        for j in range(ai):
            e(f"s_mul_i32 s36, s35, {ai * 1024}")
            e(f"s_add_u32 m0, s36, {stage * STAGE + j * 1024}")
            e(f"s_add_u32 s36, s{ksoff}, {j * 8 * lda}")
            e(f"buffer_load_dwordx4 v{vA[j & 1]}, s[8:11], s36 offen lds")
        for j in range(bi):
            e(f"s_mul_i32 s36, s35, {bi * 1024}")
            e(f"s_add_u32 m0, s36, {stage * STAGE + SA + j * 1024}")
            e(f"s_add_u32 s36, s{ksoff + 1}, {j * rows_per * ldb}")
            e(f"buffer_load_dwordx4 v{vB}, s[12:15], s36 offen lds")

    def read_frags(fs, stage, kk):
        if "nolds" in dbg:
            return
        base = FR + fs * nfr
        for tm in range(TM):
            r = base + tm * 4
            off = stage * STAGE + tm * 4096
            va = vRA[kk] if off < 65536 else vRA2[kk]
            e(f"ds_read_b128 v[{r}:{r + 3}], v{va} offset:{off & 65535}")
        for tn in range(TN):
            r = base + TM * 4 + tn * 4
            for i in range(2):
                off = stage * STAGE + (kk * 16 + 4 * i) * RB
                vb = vRB[tn] if off < 65536 else vRB2[tn]
                e(f"ds_read_b64_tr_b16 v[{r + 2 * i}:{r + 2 * i + 1}], v{vb} offset:{off & 65535}")

    def mfmas(fs):
        if "nomfma" in dbg:
            return
        base = FR + fs * nfr
        for tm in range(TM):
            for tn in range(TN):
                a = acc(tm, tn)
                ra = base + tm * 4
                rb = base + TM * 4 + tn * 4
                e(f"v_mfma_f32_32x32x16_bf16 v[{a}:{a + 15}], v[{rb}:{rb + 3}], v[{ra}:{ra + 3}], v[{a}:{a + 15}]")

    nrd = TM + 2 * TN
    nld = ai + bi
    e(f"s_mul_i32 s40, s39, {KT * 128}")
    e(f"s_mul_i32 s41, s39, {KT * 64 * ldb}")

    def issue(stage):
        dma(stage, 40)
        e("s_add_u32 s40, s40, 128")
        e(f"s_add_u32 s41, s41, {64 * ldb}")

    def compute(stage, nxt):
        for kk in range(4):
            if kk < 3:
                read_frags((kk + 1) & 1, stage, kk + 1)
                e(f"s_waitcnt lgkmcnt({nrd})")
            elif nxt is not None:
                read_frags(0, nxt, 0)
                e(f"s_waitcnt lgkmcnt({nrd})")
            else:
                e("s_waitcnt lgkmcnt(0)")
            mfmas(kk & 1)

    for t in range(D - 1):
        issue(t)
    if LA:
        e(f"s_waitcnt vmcnt({(D - 2) * nld})")
        e("s_barrier")
        read_frags(0, 0, 0)
    steady = KT - D + 1
    nloop = steady // D
    t = 0
    if nloop > 0:
        e(f"s_mov_b32 s42, {nloop}")
        loop = k.label("loop")
        e(f"{loop}:")
        for i in range(D):
            e(f"s_waitcnt vmcnt({(D - 2 - LA) * nld})")
            e("s_barrier")
            issue((i + D - 1) % D)
            if not LA:
                read_frags(0, i, 0)
            compute(i, (i + 1) % D if LA else None)
        e("s_sub_u32 s42, s42, 1")
        e("s_cmp_lg_u32 s42, 0")
        e(f"s_cbranch_scc1 {loop}")
        t = nloop * D
    while t < KT:
        rem = KT - 1 - t
        if rem > 0 or not LA:
            e(f"s_waitcnt vmcnt({max(0, min(rem - LA, D - 2 - LA)) * nld})")
            e("s_barrier")
        if t + D - 1 < KT:
            issue((t + D - 1) % D)
        if not LA:
            read_frags(0, t % D, 0)
        compute(t % D, (t + 1) % D if (rem > 0 and LA) else None)
        t += 1
    e("s_nop 15")
    e("s_nop 7")
    f32out = epi.f32
    ES = 4 if f32out else 2
    RBW = TN * 32 * ES
    STR = RBW + 16
    WSZ = TM * 32 * STR
    assert 4 * WSZ <= D * STAGE
    CH = RBW // 16
    RPI = 64 // CH
    NI = TM * 32 // RPI
    e("s_barrier")
    e("v_and_b32 v6, 31, v2")
    e(f"v_mul_u32_u24 v6, {STR}, v6")
    e("v_lshrrev_b32 v7, 5, v2")
    e(f"v_lshlrev_b32 v7, {4 if f32out else 3}, v7")
    e("v_add_u32 v6, v6, v7")
    e(f"s_mul_i32 s36, s35, {WSZ}")
    e("v_add_u32 v6, s36, v6")
    for tm in range(TM):
        for tn in range(TN):
            a = acc(tm, tn)
            for rg in range(4):
                r = a + 4 * rg
                off = tm * 32 * STR + (tn * 32 + 8 * rg) * ES
                if f32out:
                    e(f"ds_write_b128 v6, v[{r}:{r + 3}] offset:{off}")
                else:
                    e(f"v_cvt_pk_bf16_f32 v{r}, v{r}, v{r + 1}")
                    e(f"v_cvt_pk_bf16_f32 v{r + 1}, v{r + 2}, v{r + 3}")
                    e(f"ds_write_b64 v6, v[{r}:{r + 1}] offset:{off}")
    lg = CH.bit_length() - 1
    e(f"v_lshrrev_b32 v8, {lg}, v2")
    e(f"v_and_b32 v9, {CH - 1}, v2")
    e(f"v_mul_u32_u24 v6, {STR}, v8")
    e("v_lshlrev_b32 v7, 4, v9")
    e("v_add_u32 v6, v6, v7")
    e("v_add_u32 v6, s36, v6")
    e(f"s_mul_i32 s36, s37, {TM * 32}")
    e("s_add_u32 s36, s36, s33")
    e("v_add_u32 v8, s36, v8")
    e(f"v_lshlrev_b32 v9, {2 if f32out else 3}, v9")
    e(f"s_mul_i32 s36, s38, {TN * 32}")
    e("s_add_u32 s36, s36, s34")
    e("v_add_u32 v9, s36, v9")
    e(f"v_mul_u32_u24 v10, {dst_stride}, v8")
    e(f"v_lshlrev_b32 v11, {2 if f32out else 1}, v9")
    e("v_add_u32 v10, v10, v11")
    if ksplit > 1:
        e(f"s_mul_i32 s36, s39, {M * dst_stride}")
        e("v_add_u32 v10, s36, v10")
    epi.pre(k)
    T = ACC
    G = min(4, NI)
    for i0 in range(0, NI, G):
        for i in range(i0, i0 + G):
            r = T + 12 * (i - i0)
            e(f"ds_read_b128 v[{r}:{r + 3}], v6 offset:{i * RPI * STR}")
            epi.load(k, r, i * RPI)
        for i in range(i0, i0 + G):
            r = T + 12 * (i - i0)
            e(f"s_waitcnt vmcnt({epi.nld * (i0 + G - 1 - i) + max(0, i - i0)}) lgkmcnt({i0 + G - 1 - i})")
            epi.apply(k, r)
            e(f"s_mov_b32 s36, {i * RPI * dst_stride}")
            if "nostore" not in dbg:
                e(f"buffer_store_dwordx4 v[{r}:{r + 3}], v10, s[16:19], s36 offen")
    e(f"{done}:")
    return k


class Epi:
    f32 = False
    nld = 0

    def pre(self, k):
        pass

    def load(self, k, r, rowoff):
        pass

    def apply(self, k, r):
        pass


class EpiF32(Epi):
    f32 = True


def unpack(k, src, dst):
    k.e(f"v_lshlrev_b32 v{dst}, 16, v{src}")
    k.e(f"v_and_b32 v{dst + 1}, 0xffff0000, v{src}")


def rnd(k, r0, r1):
    k.e(f"v_cvt_pk_bf16_f32 v{r0}, v{r0}, v{r1}")
    k.e(f"v_and_b32 v{r1}, 0xffff0000, v{r0}")
    k.e(f"v_lshlrev_b32 v{r0}, 16, v{r0}")


class EpiGelu(Epi):
    def apply(self, k, r):
        e = k.e
        for p in range(4):
            unpack(k, r + p, 12)
            for y in (12, 13):
                e(f"v_mul_f32 v16, v{y}, v{y}")
                e(f"v_mul_f32 v16, v16, v{y}")
                e("v_mul_f32 v16, 0x3d372713, v16")
                e(f"v_add_f32 v16, v16, v{y}")
                e("v_mul_f32 v16, 0xc0135761, v16")
                e("v_exp_f32 v16, v16")
                e("s_nop 0")
                e("v_add_f32 v16, 1.0, v16")
                e("v_rcp_f32 v16, v16")
                e("s_nop 0")
                e(f"v_mul_f32 v{y}, v{y}, v16")
            e(f"v_cvt_pk_bf16_f32 v{r + p}, v12, v13")


class EpiResid(Epi):
    nld = 1

    def __init__(self, gidx, xstride):
        self.gidx, self.xs = gidx, xstride

    def pre(self, k):
        e = k.e
        e("v_lshlrev_b32 v12, 2, v9")
        e(f"s_mov_b32 s36, {self.gidx * 2048}")
        e("buffer_load_dwordx4 v[20:23], v12, s[20:23], s36 offen")
        e("buffer_load_dwordx4 v[24:27], v12, s[20:23], s36 offen offset:16")
        e(f"v_mul_u32_u24 v11, {self.xs}, v8")
        e("v_lshlrev_b32 v12, 1, v9")
        e("v_add_u32 v11, v11, v12")
        e("s_waitcnt vmcnt(0)")

    def load(self, k, r, rowoff):
        k.e(f"s_mov_b32 s36, {rowoff * self.xs}")
        k.e(f"buffer_load_dwordx4 v[{r + 4}:{r + 7}], v11, s[24:27], s36 offen")

    def apply(self, k, r):
        e = k.e
        for p in range(4):
            unpack(k, r + p, 12)
            e(f"v_mul_f32 v12, v12, v{20 + 2 * p}")
            e(f"v_mul_f32 v13, v13, v{21 + 2 * p}")
            rnd(k, 12, 13)
            unpack(k, r + 4 + p, 14)
            e("v_add_f32 v12, v12, v14")
            e("v_add_f32 v13, v13, v15")
            e(f"v_cvt_pk_bf16_f32 v{r + p}, v12, v13")


class EpiGate(Epi):
    nld = 2

    def pre(self, k):
        e = k.e
        e("v_mul_u32_u24 v11, 3584, v8")
        e("v_lshlrev_b32 v12, 1, v9")
        e("v_add_u32 v11, v11, v12")
        e("v_lshlrev_b32 v17, 1, v8")

    def load(self, k, r, rowoff):
        k.e(f"s_mov_b32 s36, {rowoff * 3584}")
        k.e(f"buffer_load_dwordx4 v[{r + 4}:{r + 7}], v11, s[24:27], s36 offen")
        k.e(f"s_mov_b32 s36, {rowoff * 2}")
        k.e(f"buffer_load_ushort v{r + 8}, v17, s[20:23], s36 offen")

    def apply(self, k, r):
        e = k.e
        e(f"v_lshlrev_b32 v{r + 8}, 16, v{r + 8}")
        for p in range(4):
            unpack(k, r + p, 12)
            e(f"v_add_f32 v12, v12, v{r + 8}")
            e(f"v_add_f32 v13, v13, v{r + 8}")
            rnd(k, 12, 13)
            unpack(k, r + 4 + p, 14)
            e("v_mul_f32 v12, v12, v14")
            e("v_mul_f32 v13, v13, v15")
            e(f"v_cvt_pk_bf16_f32 v{r + p}, v12, v13")
```

```python
from fw import Kern, WS, KA

LOG2E = 0x3fb8aa3b


def butterfly_addrs(k, vlane, vbase):
    for i in range(6):
        k.e(f"v_xor_b32 v{vbase+i}, {1 << i}, v{vlane}")
        k.e(f"v_lshlrev_b32 v{vbase+i}, 2, v{vbase+i}")


def wave_sum(k, vsrc, vtmp, vaddr):
    for i in range(6):
        k.e(f"ds_bpermute_b32 v{vtmp}, v{vaddr+i}, v{vsrc}")
        k.e("s_waitcnt lgkmcnt(0)")
        k.e(f"v_add_f32 v{vsrc}, v{vsrc}, v{vtmp}")


def mod_kernel():
    k = Kern("mod_kernel", grid=(48, 1, 1), lds=4096, vgpr=128, sgpr=40)
    e = k.e
    e("s_cmp_ge_u32 s2, 48")
    e("s_cbranch_scc1 mod_done")
    k.load_ptr(4, "c")
    k.load_ptr(6, "wmod")
    k.load_ptr(8, "ws")
    e("s_waitcnt lgkmcnt(0)")
    k.srd_from_ptr(12, 4, 1024)
    k.srd_from_ptr(16, 6, 512 * 3072 * 2)
    k.srd_ws(20, 8, "mod")
    e("v_lshlrev_b32 v2, 2, v0")
    e("buffer_load_dword v1, v2, s[12:15], 0 offen")
    e("s_waitcnt vmcnt(0)")
    e("v_lshlrev_b32 v4, 16, v1")
    e("v_and_b32 v5, 0xffff0000, v1")
    for r in (4, 5):
        e(f"v_mul_f32 v3, 0xbfb8aa3b, v{r}")
        e("v_exp_f32 v3, v3")
        e("s_nop 0")
        e("v_add_f32 v3, 1.0, v3")
        e("v_rcp_f32 v3, v3")
        e("s_nop 0")
        e(f"v_mul_f32 v3, v{r}, v3")
        e("v_cvt_pk_bf16_f32 v3, v3, v3")
        e(f"v_lshlrev_b32 v{r}, 16, v3")
    e("v_lshlrev_b32 v2, 3, v0")
    e("ds_write_b64 v2, v[4:5]")
    e("s_waitcnt lgkmcnt(0)")
    e("s_barrier")
    e("v_lshrrev_b32 v6, 6, v0")
    e("v_and_b32 v7, 63, v0")
    e("s_lshl_b32 s24, s2, 7")
    e("v_lshlrev_b32 v8, 1, v7")
    e("v_add_u32 v8, s24, v8")
    e("v_mul_u32_u24 v9, 128*6144, v6")
    e("v_add_u32 v8, v8, v9")
    e("v_lshlrev_b32 v9, 9, v6")
    e("v_mov_b32 v10, 0")
    e("s_mov_b32 s25, 0")
    for ch in range(4):
        for i in range(32):
            e(f"buffer_load_ushort v{32+i}, v8, s[16:19], s25 offen")
            e("s_add_u32 s25, s25, 6144")
        for i in range(8):
            e(f"ds_read_b128 v[{64+4*i}:{67+4*i}], v9 offset:{(ch*32+4*i)*4}")
        e("s_waitcnt vmcnt(0) lgkmcnt(0)")
        for i in range(32):
            e(f"v_lshlrev_b32 v{32+i}, 16, v{32+i}")
        for i in range(32):
            e(f"v_fmac_f32 v10, v{32+i}, v{64+i}")
    e("v_lshlrev_b32 v11, 2, v0")
    e("ds_write_b32 v11, v10 offset:2048")
    e("s_waitcnt lgkmcnt(0)")
    e("s_barrier")
    e("v_readfirstlane_b32 s26, v6")
    e("s_nop 3")
    e("s_cmp_lg_u32 s26, 0")
    e("s_cbranch_scc1 mod_done")
    e("v_lshlrev_b32 v11, 2, v7")
    e("ds_read_b32 v12, v11 offset:2048")
    e("ds_read_b32 v13, v11 offset:2304")
    e("ds_read_b32 v14, v11 offset:2560")
    e("ds_read_b32 v15, v11 offset:2816")
    e("s_waitcnt lgkmcnt(0)")
    e("v_add_f32 v12, v12, v13")
    e("v_add_f32 v14, v14, v15")
    e("v_add_f32 v12, v12, v14")
    e("v_cvt_pk_bf16_f32 v12, v12, v12")
    e("v_lshlrev_b32 v12, 16, v12")
    e("s_lshl_b32 s24, s2, 8")
    e("v_add_u32 v11, s24, v11")
    e("buffer_store_dword v12, v11, s[20:23], 0 offen")
    e("mod_done:")
    return k


def ln_kernel(name, src, src_stride, src_coloff, ncols, dst, dst_stride, affine=None, red=None):
    nl = ncols // 128
    k = Kern(name, grid=(512, 1, 1), vgpr=160 if red else 96, sgpr=40)
    e = k.e
    done = k.label("done")
    e("s_cmp_ge_u32 s2, 512")
    e(f"s_cbranch_scc1 {done}")
    k.load_ptr(8, "ws")
    if src[0] == "arg":
        k.load_ptr(4, src[1])
    e("s_waitcnt lgkmcnt(0)")
    if src[0] == "arg":
        k.srd_from_ptr(12, 4, src[2])
    else:
        k.srd_ws(12, 8, src[1])
    k.srd_ws(16, 8, dst)
    k.srd_ws(20, 8, "mod")
    if red:
        k.srd_ws(28, 8, "part")
        k.srd_ws(32, 8, "x1")
    e("v_lshrrev_b32 v1, 6, v0")
    e("v_and_b32 v2, 63, v0")
    e("s_lshl_b32 s24, s2, 2")
    e("v_add_u32 v1, s24, v1")
    e(f"v_mul_u32_u24 v3, {src_stride}, v1")
    e("v_lshlrev_b32 v4, 2, v2")
    e("v_add_u32 v3, v3, v4")
    e(f"v_mul_u32_u24 v5, {dst_stride}, v1")
    e("v_add_u32 v5, v5, v4")
    for j in range(nl):
        e(f"buffer_load_dword v{10+j}, v3, s[12:15], 0 offen offset:{src_coloff + j*256}")
    if red:
        nks, gidx = red
        e("v_lshlrev_b32 v6, 3, v2")
        e("v_lshlrev_b32 v8, 11, v1")
        e("v_add_u32 v8, v8, v6")
        for ks in range(nks):
            e(f"s_mov_b32 s25, {ks * 2048 * 2048}")
            for j in range(nl):
                r = 96 + 2 * (ks * nl + j)
                e(f"buffer_load_dwordx2 v[{r}:{r + 1}], v8, s[28:31], s25 offen offset:{j * 512}")
        e(f"s_mov_b32 s25, {gidx * 2048}")
        for j in range(nl):
            e(f"buffer_load_dwordx2 v[{84 + 2 * j}:{85 + 2 * j}], v6, s[20:23], s25 offen offset:{j * 512}")
        e("s_waitcnt vmcnt(0)")
        for j in range(nl):
            a = 96 + 2 * j
            for ks in range(1, nks):
                r = 96 + 2 * (ks * nl + j)
                e(f"v_add_f32 v{a}, v{a}, v{r}")
                e(f"v_add_f32 v{a + 1}, v{a + 1}, v{r + 1}")
            e(f"v_cvt_pk_bf16_f32 v{a}, v{a}, v{a + 1}")
            e(f"v_and_b32 v{a + 1}, 0xffff0000, v{a}")
            e(f"v_lshlrev_b32 v{a}, 16, v{a}")
            e(f"v_mul_f32 v{a}, v{a}, v{84 + 2 * j}")
            e(f"v_mul_f32 v{a + 1}, v{a + 1}, v{85 + 2 * j}")
            e(f"v_cvt_pk_bf16_f32 v{a}, v{a}, v{a + 1}")
            e(f"v_and_b32 v{a + 1}, 0xffff0000, v{a}")
            e(f"v_lshlrev_b32 v{a}, 16, v{a}")
            e(f"v_lshlrev_b32 v{a + 8}, 16, v{10 + j}")
            e(f"v_and_b32 v{a + 9}, 0xffff0000, v{10 + j}")
            e(f"v_add_f32 v{a}, v{a}, v{a + 8}")
            e(f"v_add_f32 v{a + 1}, v{a + 1}, v{a + 9}")
            e(f"v_cvt_pk_bf16_f32 v{10 + j}, v{a}, v{a + 1}")
            e(f"buffer_store_dword v{10 + j}, v3, s[32:35], 0 offen offset:{j * 256}")
    if affine:
        e("v_lshlrev_b32 v6, 3, v2")
        e(f"s_mov_b32 s25, {affine[0]*2048}")
        e(f"s_mov_b32 s26, {affine[1]*2048}")
        for j in range(nl):
            e(f"buffer_load_dwordx2 v[{60+2*j}:{61+2*j}], v6, s[20:23], s25 offen offset:{j*512}")
            e(f"buffer_load_dwordx2 v[{76+2*j}:{77+2*j}], v6, s[20:23], s26 offen offset:{j*512}")
    butterfly_addrs(k, 2, 50)
    if not red:
        e(f"s_waitcnt vmcnt({2*nl if affine else 0})")
    for j in range(nl):
        e(f"v_lshlrev_b32 v{20+2*j}, 16, v{10+j}")
        e(f"v_and_b32 v{21+2*j}, 0xffff0000, v{10+j}")
    e("v_add_f32 v7, v20, v21")
    for j in range(1, nl):
        e(f"v_add_f32 v7, v7, v{20+2*j}")
        e(f"v_add_f32 v7, v7, v{21+2*j}")
    wave_sum(k, 7, 8, 50)
    e(f"v_mul_f32 v7, {1.0/ncols!r}, v7")
    for j in range(2 * nl):
        e(f"v_sub_f32 v{20+j}, v{20+j}, v7")
    e("v_mul_f32 v9, v20, v20")
    for j in range(1, 2 * nl):
        e(f"v_fmac_f32 v9, v{20+j}, v{20+j}")
    wave_sum(k, 9, 8, 50)
    e(f"v_mul_f32 v9, {1.0/ncols!r}, v9")
    e("v_add_f32 v9, 0x3727c5ac, v9")
    e("v_rsq_f32 v9, v9")
    e("s_nop 0")
    if affine:
        e("s_waitcnt vmcnt(0)")
    for j in range(nl):
        a, b = 20 + 2 * j, 21 + 2 * j
        e(f"v_mul_f32 v{a}, v{a}, v9")
        e(f"v_mul_f32 v{b}, v{b}, v9")
        e(f"v_cvt_pk_bf16_f32 v{a}, v{a}, v{b}")
        if affine:
            e(f"v_and_b32 v{b}, 0xffff0000, v{a}")
            e(f"v_lshlrev_b32 v{a}, 16, v{a}")
            c0, c1, s0, s1 = 60 + 2 * j, 61 + 2 * j, 76 + 2 * j, 77 + 2 * j
            e(f"v_add_f32 v{c0}, 1.0, v{c0}")
            e(f"v_add_f32 v{c1}, 1.0, v{c1}")
            e(f"v_cvt_pk_bf16_f32 v{c0}, v{c0}, v{c1}")
            e(f"v_and_b32 v{c1}, 0xffff0000, v{c0}")
            e(f"v_lshlrev_b32 v{c0}, 16, v{c0}")
            e(f"v_mul_f32 v{a}, v{a}, v{c0}")
            e(f"v_mul_f32 v{b}, v{b}, v{c1}")
            e(f"v_cvt_pk_bf16_f32 v{a}, v{a}, v{b}")
            e(f"v_and_b32 v{b}, 0xffff0000, v{a}")
            e(f"v_lshlrev_b32 v{a}, 16, v{a}")
            e(f"v_add_f32 v{a}, v{a}, v{s0}")
            e(f"v_add_f32 v{b}, v{b}, v{s1}")
            e(f"v_cvt_pk_bf16_f32 v{a}, v{a}, v{b}")
        e(f"buffer_store_dword v{a}, v5, s[16:19], 0 offen offset:{j*256}")
    e(f"{done}:")
    return k
```

```python
import sys
sys.path.insert(0, "work")
from fw import build_file, NAME
from k_small import mod_kernel, ln_kernel
from k_gemm import gemm_kernel, Epi, EpiF32, EpiGelu, EpiResid, EpiGate
import os
KS = int(os.environ.get("KS", 4))
from k_attn import attn_kernel


def main():
    ks = [mod_kernel(),
          ln_kernel("ln1_kernel", ("arg", "x", 2048 * 512 * 2), 1024, 0, 512, "h1", 1024, affine=(1, 0)),
          gemm_kernel("qproj_kernel", 2048, 4096, 512, ("ws", "h1"), 1024, ("arg", "wq", 512 * 4096 * 2), 8192,
                      128, 128, Epi(), ("ws", "q"), 8192, D=2, LA=0),
          attn_kernel(),
          gemm_kernel("wo_kernel", 2048, 512, 4096, ("ws", "o"), 8192, ("arg", "wo", 4096 * 512 * 2), 1024,
                      128, 128, EpiF32(), ("ws", "part"), 2048, D=3, LA=0, ksplit=KS),
          ln_kernel("ln2_kernel", ("arg", "x", 2048 * 512 * 2), 1024, 0, 512, "h2", 1024, affine=(4, 3), red=(KS, 2)),
          gemm_kernel("win_kernel", 2048, 1792, 512, ("ws", "h2"), 1024, ("arg", "win", 512 * 1792 * 2), 3584,
                      128, 128, EpiGelu(), ("ws", "z"), 3584, D=3, LA=0),
          ln_kernel("ln3_kernel", ("ws", "z"), 3584, 1792, 896, "z2", 1792),
          gemm_kernel("wsp_kernel", 2048, 896, 2048, ("arg", "wsp", 2048 * 2048 * 2), 4096, ("ws", "z2"), 1792,
                      128, 64, EpiGate(), ("ws", "u"), 1792,
                      aux1=("arg", "bsp", 4096), aux2=("ws", "z"), D=3, LA=0),
          gemm_kernel("wout_kernel", 2048, 512, 896, ("ws", "u"), 1792, ("arg", "wout", 896 * 512 * 2), 1024,
                      64, 64, EpiResid(5, 1024), ("arg", "out", 2048 * 512 * 2), 1024,
                      aux1=("ws", "mod"), aux2=("ws", "x1"), D=5, LA=0),
          ]
    build_file(ks, os.environ.get("OUT", f"cdna_kernels/{NAME}.s"))


if __name__ == "__main__":
    main()
```

```python
from fw import Kern, WS, KA


def attn_kernel(name='attn_kernel', dbg=()):
    NWG = 512
    TILE = 32768
    k = Kern(name, grid=(NWG, 1, 1), lds=2 * TILE, sgpr=64)
    e = k.e
    done = k.label("done")
    e(f"s_cmp_ge_u32 s2, {NWG}")
    e(f"s_cbranch_scc1 {done}")
    k.load_ptr(4, "k")
    k.load_ptr(6, "v")
    k.load_ptr(28, "ws")
    e("s_waitcnt lgkmcnt(0)")
    e("s_and_b32 s30, s2, 7")
    e("s_lshl_b32 s30, s30, 2")
    e("s_lshr_b32 s31, s2, 3")
    e("s_and_b32 s31, s31, 3")
    e("s_add_u32 s30, s30, s31")
    e("s_lshr_b32 s31, s2, 5")
    e("s_lshl_b32 s32, s30, 19")
    e("s_add_u32 s8, s4, s32")
    e("s_addc_u32 s9, s5, 0")
    e("s_and_b32 s9, s9, 0xffff")
    e("s_mov_b32 s10, 0x80000")
    e("s_mov_b32 s11, 0x20000")
    e("s_add_u32 s12, s6, s32")
    e("s_addc_u32 s13, s7, 0")
    e("s_and_b32 s13, s13, 0xffff")
    e("s_mov_b32 s14, 0x80000")
    e("s_mov_b32 s15, 0x20000")
    k.srd_ws(16, 28, "q")
    k.srd_ws(20, 28, "o")
    e("v_lshrrev_b32 v1, 6, v0")
    e("v_and_b32 v2, 63, v0")
    e("v_readfirstlane_b32 s35, v1")
    e("v_and_b32 v3, 31, v2")
    e("v_lshrrev_b32 v4, 5, v2")
    e("s_lshl_b32 s33, s31, 7")
    e("s_lshl_b32 s34, s35, 5")
    e("s_add_u32 s33, s33, s34")
    e("v_add_u32 v5, s33, v3")
    e("v_lshlrev_b32 v6, 13, v5")
    e("s_lshl_b32 s34, s30, 8")
    e("v_add_u32 v6, s34, v6")
    e("v_lshlrev_b32 v7, 4, v4")
    e("v_add_u32 v7, v6, v7")
    QF = 32
    for ds in range(8):
        e(f"buffer_load_dwordx4 v[{QF + 4 * ds}:{QF + 4 * ds + 3}], v7, s[16:19], 0 offen offset:{ds * 32}")
    vDK = [8, 9, 10, 11]
    vDV = 12
    e("v_lshrrev_b32 v13, 4, v2")
    e("v_and_b32 v14, 15, v2")
    e("s_lshl_b32 s34, s35, 4")
    e("v_add_u32 v15, s34, v13")
    e("v_lshlrev_b32 v15, 8, v15")
    e("v_xor_b32 v16, v14, v13")
    e("v_lshlrev_b32 v16, 4, v16")
    e(f"v_add_u32 v{vDK[0]}, v15, v16")
    for j in range(1, 4):
        e(f"v_xor_b32 v{vDK[j]}, {j << 6}, v{vDK[0]}")
    e("v_lshlrev_b32 v16, 2, v13")
    e("v_xor_b32 v16, v16, v14")
    e("v_lshlrev_b32 v16, 4, v16")
    e(f"v_add_u32 v{vDV}, v15, v16")
    vRK = list(range(16, 24))
    vRV = list(range(24, 28))
    e("v_and_b32 v13, 15, v3")
    e("v_xor_b32 v13, v13, v4")
    e("v_lshlrev_b32 v13, 4, v13")
    e("v_lshlrev_b32 v14, 8, v3")
    e(f"v_add_u32 v{vRK[0]}, v13, v14")
    for ds in range(1, 8):
        e(f"v_xor_b32 v{vRK[ds]}, {ds << 5}, v{vRK[0]}")
    e("v_lshrrev_b32 v13, 4, v2")
    e("v_and_b32 v14, 15, v2")
    e("v_lshrrev_b32 v15, 1, v13")
    e("v_lshlrev_b32 v15, 2, v15")
    e("v_lshrrev_b32 v28, 2, v14")
    e("v_add_u32 v15, v15, v28")
    e("v_lshlrev_b32 v15, 8, v15")
    e("v_and_b32 v29, 1, v14")
    e("v_lshlrev_b32 v29, 3, v29")
    e("v_add_u32 v15, v15, v29")
    e("v_and_b32 v13, 1, v13")
    e("v_lshlrev_b32 v13, 1, v13")
    e("v_and_b32 v29, 3, v14")
    e("v_lshrrev_b32 v29, 1, v29")
    e("v_add_u32 v13, v13, v29")
    e("v_lshlrev_b32 v28, 2, v28")
    for db in range(4):
        e(f"v_add_u32 v29, {4 * db}, v13")
        e("v_xor_b32 v29, v29, v28")
        e("v_lshlrev_b32 v29, 4, v29")
        e(f"v_add_u32 v{vRV[db]}, v15, v29")
        e(f"v_add_u32 v{vRV[db]}, 16384, v{vRV[db]}")
    SAB = [64, 208]
    OA = 96
    PF = 160
    KF = 176
    VF = 192
    vM, vL, vT, vT2, vAl = 28, 240, 30, 31, 14
    k.vgpr = 244
    for i in range(64):
        e(f"v_mov_b32 v{OA + i}, 0")
    e(f"v_mov_b32 v{vM}, 0xff800000")
    e(f"v_mov_b32 v{vL}, 0")
    e(f"v_mov_b32 v{vL + 1}, 0")
    import struct
    c = struct.unpack("<I", struct.pack("<f", (128 ** -0.5) * 1.4426950408889634))[0]
    e(f"s_mov_b32 s40, {c}")
    e(f"s_mov_b32 s44, {c}")
    e(f"s_mov_b32 s45, {c}")

    def dma_k(stage, soff):
        if "nodma" in dbg:
            return
        for j in range(4):
            e(f"s_lshl_b32 s36, s35, 12")
            e(f"s_add_u32 m0, s36, {stage * TILE + j * 1024}")
            e(f"s_add_u32 s36, s{soff}, {j * 1024}")
            e(f"buffer_load_dwordx4 v{vDK[j]}, s[8:11], s36 offen lds")

    def dma_v(stage, soff):
        if "nodma" in dbg:
            return
        for j in range(4):
            e(f"s_lshl_b32 s36, s35, 12")
            e(f"s_add_u32 m0, s36, {stage * TILE + 16384 + j * 1024}")
            e(f"s_add_u32 s36, s{soff}, {j * 1024}")
            e(f"buffer_load_dwordx4 v{vDV}, s[12:15], s36 offen lds")

    def qk_stream(SA, st):
        out = []
        seq = [(kb, ds) for kb in range(2) for ds in range(8)]
        def rdk(n):
            kb, ds = seq[n]
            r = KF + 4 * (n & 3)
            return f"ds_read_b128 v[{r}:{r + 3}], v{vRK[ds]} offset:{st + kb * 8192}"
        pre = [rdk(n) for n in range(3)]
        for n in range(16):
            kb, ds = seq[n]
            grp = []
            if n + 3 < 16:
                grp += [rdk(n + 3), "s_waitcnt lgkmcnt(3)"]
            else:
                grp += [f"s_waitcnt lgkmcnt({15 - n})"]
            r = KF + 4 * (n & 3)
            a = SA + 16 * kb
            cin = "0" if ds == 0 else f"v[{a}:{a + 15}]"
            grp.append(f"v_mfma_f32_32x32x16_bf16 v[{a}:{a + 15}], v[{r}:{r + 3}], v[{QF + 4 * ds}:{QF + 4 * ds + 3}], {cin}")
            out.append(grp)
        return pre, out

    def softmax_stream(SA):
        o = []
        o.append(f"v_max3_f32 v{vT}, v{SA}, v{SA + 1}, v{SA + 2}")
        for i in range(3, 31, 2):
            o.append(f"v_max3_f32 v{vT}, v{vT}, v{SA + i}, v{SA + i + 1}")
        o.append(f"v_max_f32 v{vT}, v{vT}, v{SA + 31}")
        o.append(f"v_mov_b32 v{vT2}, v{vT}")
        o.append("s_nop 1")
        o.append(f"v_permlane32_swap_b32 v{vT}, v{vT2}")
        o.append(f"v_max_f32 v{vT}, v{vT}, v{vT2}")
        o.append(f"v_mul_f32 v{vT}, s40, v{vT}")
        o.append(f"v_max_f32 v{vT}, v{vT}, v{vM}")
        o.append(f"v_sub_f32 v{vAl}, v{vM}, v{vT}")
        o.append(f"v_exp_f32 v{vAl}, v{vAl}")
        o.append(f"v_mov_b32 v{vM}, v{vT}")
        o.append(f"v_mul_f32 v{vT}, -1.0, v{vT}")
        for i in range(0, 32, 2):
            o.append(f"v_pk_fma_f32 v[{SA + i}:{SA + i + 1}], v[{SA + i}:{SA + i + 1}], s[44:45], v[{vT}:{vT + 1}] op_sel_hi:[1,1,0]")
            if i >= 2:
                o.append(f"v_exp_f32 v{SA + i - 2}, v{SA + i - 2}")
                o.append(f"v_exp_f32 v{SA + i - 1}, v{SA + i - 1}")
        o.append(f"v_exp_f32 v{SA + 30}, v{SA + 30}")
        o.append(f"v_exp_f32 v{SA + 31}, v{SA + 31}")
        o.append(f"v_pk_mul_f32 v[{vL}:{vL + 1}], v[{vL}:{vL + 1}], v[{vAl}:{vAl + 1}] op_sel_hi:[1,0]")
        for i in range(0, 64, 2):
            o.append(f"v_pk_mul_f32 v[{OA + i}:{OA + i + 1}], v[{OA + i}:{OA + i + 1}], v[{vAl}:{vAl + 1}] op_sel_hi:[1,0]")
        for i in range(0, 32, 2):
            o.append(f"v_pk_add_f32 v[{vL}:{vL + 1}], v[{vL}:{vL + 1}], v[{SA + i}:{SA + i + 1}]")
        for i in range(16):
            o.append(f"v_cvt_pk_bf16_f32 v{PF + i}, v{SA + 2 * i}, v{SA + 2 * i + 1}")
        return o

    def pv(st):
        seq2 = [(ks, db) for ks in range(4) for db in range(4)]
        def rdv(n):
            ks, db = seq2[n]
            r = VF + 4 * (n & 3)
            for i in range(2):
                if "nolds" in dbg:
                    continue
                e(f"ds_read_b64_tr_b16 v[{r + 2 * i}:{r + 2 * i + 1}], v{vRV[db]} offset:{st + (16 * ks + 8 * i) * 256}")
        for n in range(3):
            rdv(n)
        for n in range(16):
            ks, db = seq2[n]
            if n + 3 < 16:
                rdv(n + 3)
                e("s_waitcnt lgkmcnt(6)")
            else:
                e(f"s_waitcnt lgkmcnt({2 * (15 - n)})")
            r = VF + 4 * (n & 3)
            a = OA + 16 * db
            if "nopv" not in dbg:
                e(f"v_mfma_f32_32x32x16_bf16 v[{a}:{a + 15}], v[{r}:{r + 3}], v[{PF + 4 * ks}:{PF + 4 * ks + 3}], v[{a}:{a + 15}]")

    e("s_mov_b32 s41, 0")
    e("s_mov_b32 s43, 0")
    dma_k(0, 41)
    e("s_add_u32 s41, s41, 16384")
    dma_k(1, 41)
    e("s_add_u32 s41, s41, 16384")
    dma_v(0, 43)
    e("s_add_u32 s43, s43, 16384")
    e("s_waitcnt vmcnt(8)")
    e("s_barrier")
    pre, grps = qk_stream(SAB[0], 0)
    for x in pre:
        e(x)
    for g in grps:
        for x in g:
            e(x)
    e("s_mov_b32 s42, 16")
    loop = k.label("loop")
    e(f"{loop}:")
    for half in range(2):
        cur, nxt = SAB[half], SAB[half ^ 1]
        e("s_waitcnt vmcnt(0)")
        e("s_barrier")
        dma_k(half, 41)
        e("s_add_u32 s41, s41, 16384")
        dma_v(half ^ 1, 43)
        e("s_add_u32 s43, s43, 16384")
        pre, grps = qk_stream(nxt, (half ^ 1) * TILE)
        sm = softmax_stream(cur)
        if "nosm" in dbg:
            sm = sm[-16:]
        if "noresc" in dbg:
            sm = [x for x in sm if not (x.startswith("v_mul_f32") and int(x.split()[1][1:-1]) >= OA and int(x.split()[1][1:-1]) < OA + 64)]
        if "noexp" in dbg:
            sm = [x for x in sm if not x.startswith("v_exp")]
        if "noqk" in dbg:
            grps = [[y for y in g if not y.startswith("v_mfma")] for g in grps]
        if "nolds" in dbg:
            pre = []
            grps = [[y for y in g if y.startswith("v_mfma")] for g in grps]
        for x in pre:
            e(x)
        per = (len(sm) + 15) // 16
        idx = 0
        for g in grps:
            for x in g:
                e(x)
            for x in sm[idx:idx + per]:
                e(x)
            idx += per
        pv(half * TILE)
    e("s_sub_u32 s42, s42, 1")
    e("s_cmp_lg_u32 s42, 0")
    e(f"s_cbranch_scc1 {loop}")
    e("s_nop 15")
    e("s_nop 7")
    e(f"v_add_f32 v{vL}, v{vL}, v{vL + 1}")
    e(f"v_mov_b32 v{vT}, v{vL}")
    e("s_nop 1")
    e(f"v_permlane32_swap_b32 v{vL}, v{vT}")
    e(f"v_add_f32 v{vL}, v{vL}, v{vT}")
    e(f"v_rcp_f32 v{vL}, v{vL}")
    e("s_nop 0")
    e("v_lshlrev_b32 v7, 3, v4")
    e("v_add_u32 v7, v6, v7")
    for db in range(4):
        for rg in range(4):
            r = OA + 16 * db + 4 * rg
            for j in range(4):
                e(f"v_mul_f32 v{r + j}, v{r + j}, v{vL}")
            e(f"v_cvt_pk_bf16_f32 v{r}, v{r}, v{r + 1}")
            e(f"v_cvt_pk_bf16_f32 v{r + 1}, v{r + 2}, v{r + 3}")
            e(f"buffer_store_dwordx2 v[{r}:{r + 1}], v7, s[20:23], 0 offen offset:{(db * 32 + 8 * rg) * 2}")
    e(f"{done}:")
    return k
```
